```python
import torch

def _softmax(x, axis=-1):
    return torch.softmax(x, dim=axis)
def _gelu(x):
    return torch.nn.functional.gelu(x, approximate="tanh")
def _silu(x):
    return torch.nn.functional.silu(x)
def _sigmoid(x):
    return torch.sigmoid(x)
def _layernorm(x, axis=-1, eps=1e-5):
    m = x.mean(dim=axis, keepdim=True)
    v = x.var(dim=axis, keepdim=True, unbiased=False)
    return (x - m) / torch.sqrt(v + eps)
def _scatter_add(tgt, idx, src, axis=0):
    return tgt.clone().index_add_(axis, idx, src)
def _segment_sum(src, seg, n):
    out = torch.zeros((n,) + src.shape[1:], dtype=src.dtype)
    return out.index_add_(0, seg, src)
def _pad(x, pw):
    flat = tuple(v for pair in reversed(pw) for v in pair)
    return torch.nn.functional.pad(x, flat)

kernel_name = 'gated_mix__grouped_kv_mqa__spectral_fnet__prompt'

def setup_inputs():

    _w = (lambda a: (lambda t: t.to(torch.bfloat16) if t.is_floating_point() else t)(torch.as_tensor(a)))
    def _A_setup():
        B, S, D, H = 1, 2048, 640, 32
        Dh = D // H
        return {
            "x": _w((lambda *s: torch.randn(*s, dtype=torch.bfloat16) * 0.05)(B, S, D)),
            "wq": _w((lambda *s: torch.randn(*s, dtype=torch.bfloat16) * 1.6)(D, H * Dh)),
            "wk": _w((lambda *s: torch.randn(*s, dtype=torch.bfloat16) * 1.6)(D, Dh)),
            "wv": _w((lambda *s: torch.randn(*s, dtype=torch.bfloat16) * 1.6)(D, Dh)),
            "wo": _w((lambda *s: torch.randn(*s, dtype=torch.bfloat16) * 1.6)(H * Dh, D)),
        }
    _A_in = _A_setup()

    def _B_setup():
        B, S, D = 1, 2048, 640
        ns = torch.arange(S)[:, None] * torch.arange(S)[None, :]
        nd = torch.arange(D)[:, None] * torch.arange(D)[None, :]
        Ws_re = torch.cos(-2.0 * torch.pi * ns / S).to(float)
        Ws_im = torch.sin(-2.0 * torch.pi * ns / S).to(float)
        Wd_re = torch.cos(-2.0 * torch.pi * nd / D).to(float)
        Wd_im = torch.sin(-2.0 * torch.pi * nd / D).to(float)
        return {
            "x": _w((lambda *s: torch.randn(*s, dtype=torch.bfloat16) * 0.05)(B, S, D)),
            "dft_seq_re": _w(Ws_re),
            "dft_seq_im": _w(Ws_im),
            "dft_hid_re": _w(Wd_re),
            "dft_hid_im": _w(Wd_im),
        }
    _B_in = _B_setup()

    return {
        "A_x": _A_in["x"],
        "A_wq": _A_in["wq"],
        "A_wk": _A_in["wk"],
        "A_wv": _A_in["wv"],
        "A_wo": _A_in["wo"],
        "B_x": _B_in["x"],
        "B_dft_seq_re": _B_in["dft_seq_re"],
        "B_dft_seq_im": _B_in["dft_seq_im"],
        "B_dft_hid_re": _B_in["dft_hid_re"],
        "B_dft_hid_im": _B_in["dft_hid_im"],
        "gate_w": _w((lambda *s: torch.randn(*s, dtype=torch.bfloat16) * 0.05)(640) * 16.0),
    }

def reference(A_x, A_wq, A_wk, A_wv, A_wo, B_x, B_dft_seq_re, B_dft_seq_im, B_dft_hid_re, B_dft_hid_im, gate_w):
    def _A_ref(x, wq, wk, wv, wo):
        B, S, D = x.shape
        H = 32
        Dh = D // H
        q = (lambda x, *d: x.permute(*d))((x @ wq).reshape(B, S, H, Dh), 0, 2, 1, 3)
        k = x @ wk
        v = x @ wv
        scores = torch.einsum("bhqd,bkd->bhqk", q, k) * (Dh ** -0.5)
        p = _softmax(scores, axis=-1)
        o = torch.einsum("bhqk,bkd->bhqd", p, v)
        return (lambda x, *d: x.permute(*d))(o, 0, 2, 1, 3).reshape(B, S, H * Dh) @ wo

    def _B_ref(x, dft_seq_re, dft_seq_im, dft_hid_re, dft_hid_im):
        a = torch.einsum("bsd,ed->bse", x, dft_hid_re)
        b = torch.einsum("bsd,ed->bse", x, dft_hid_im)
        y = torch.einsum("ts,bse->bte", dft_seq_re, a) - torch.einsum("ts,bse->bte", dft_seq_im, b)
        return y

    x = A_x
    g = _sigmoid((x * gate_w).sum(-1, keepdims=True))
    a = _A_ref(x, A_wq, A_wk, A_wv, A_wo)
    b = _B_ref(x, B_dft_seq_re, B_dft_seq_im, B_dft_hid_re, B_dft_hid_im)
    return g * a + (1 - g) * b
```

```python
import sys, math, struct

NAME = "gated_mix__grouped_kv_mqa__spectral_fnet__prompt"
DEBUGQ = "--debugq" in sys.argv
FORCE_FB = "--forcefb" in sys.argv

L = []
def e(s): L.append("    " + s)
def lab(s): L.append(s + ":")
def cm(s): L.append("    ; " + s)
_uid = [0]
def uid(p):
    _uid[0] += 1
    return f"L{p}{_uid[0]}"
def f32(x): return "0x%08x" % struct.unpack("<I", struct.pack("<f", x))[0]
def vr(a, n): return f"v[{a}:{a+n-1}]"
def sr(a, n): return f"s[{a}:{a+n-1}]"

KV = 0x0; G_ = 0x30000; CNT = 0x40000
XF = 0x100000; WDF = 0x400000; WSF = 0x500000; AF = 0x800000; YF = 0xA00000; OF = 0x1000000
QD = 0x1300000
WS_SIZE = 0x1700000
YP = 2576
C_PREP = 0; C_S1 = 8; C_Y = 19; C_O = 51; NCNT = 83
OOB = 0x40000000
XF_ARR = 17*40*1024
AF_ARR = 11*34*1024
L_WKV = 0; L_PART = 25600; L_SYNC = 37888; L_CH = 38912; SLOT = 18432
SY_KVP = 0; SY_PREP = 4; SY_ARR = 8; SY_S1 = 20; SY_S2 = 24; SY_KVRDY = 28
L_WO = 2560; L_RED = 104960
SX, SWQ, SWKV, SWO, SWS, SOUT, SDBG, SGATE, SREP = 8, 12, 16, 20, 24, 28, 32, 36, 40
def S(b): return sr(b, 4)
s_w, s_rb, s_hg, s_xcd, s_idx = "s3", "s4", "s5", "s6", "s7"
s_bud = "s92"
s_vm = "s[94:95]"
s_hw = "s93"

def spin_check(done):
    e(f"s_sub_u32 {s_bud}, {s_bud}, 1")
    e(f"s_cbranch_scc1 {done}")

def lds_signal(vaddr, vone, off):
    e("s_mov_b64 exec, 1")
    e(f"ds_add_u32 {vaddr}, {vone} offset:{off}")
    e("s_mov_b64 exec, -1")

def lds_wait(vaddr, vtmp, off, target, stmp="s44"):
    a = uid("w"); d = uid("wd")
    lab(a)
    e(f"ds_read_b32 {vtmp}, {vaddr} offset:{off}")
    e("s_waitcnt lgkmcnt(0)")
    e(f"v_readfirstlane_b32 {stmp}, {vtmp}")
    e(f"s_cmp_ge_u32 {stmp}, {target}")
    e(f"s_cbranch_scc1 {d}")
    spin_check(d)
    e("s_sleep 1")
    e(f"s_branch {a}")
    lab(d)

def prologue():
    e("s_cmp_ge_u32 s2, 256")
    e("s_cbranch_scc1 Lend")
    e("s_load_dwordx16 s[64:79], s[0:1], 0")
    e("s_load_dwordx8 s[80:87], s[0:1], 64")
    e("s_load_dwordx4 s[88:91], s[0:1], 96")
    e("v_lshrrev_b32 v1, 6, v0")
    e("v_and_b32 v0, 63, v0")
    e(f"s_and_b32 {s_xcd}, s2, 7")
    e(f"v_readfirstlane_b32 {s_w}, v1")
    e(f"s_lshr_b32 {s_idx}, s2, 3")
    e(f"s_and_b32 {s_rb}, {s_idx}, 3")
    e(f"s_lshl_b32 s44, {s_xcd}, 2")
    e(f"s_add_u32 {s_rb}, {s_rb}, s44")
    e(f"s_lshr_b32 {s_hg}, {s_idx}, 2")
    e(f"s_mov_b32 {s_bud}, 0x100000")
    e("s_mov_b32 s94, 0x000FFFFF")
    e("s_mov_b32 s95, 0x000FFFFF")
    e(f"s_sub_u32 {s_hw}, {s_w}, 8")
    for b, n in ((SX, 2621440), (SWQ, 819200), (SWKV, 25600), (SWO, 819200), (SWS, WS_SIZE),
                 (SOUT, 2621440), (SDBG, 256), (SGATE, 1280), (SREP, 819200)):
        e(f"s_mov_b32 s{b+2}, {n}")
        e(f"s_mov_b32 s{b+3}, 0x00020000")
    e(f"s_cmp_ge_u32 {s_hg}, 4")
    e("s_waitcnt lgkmcnt(0)")
    e(f"s_cselect_b32 s{SWKV}, s70, s68")
    e(f"s_cselect_b32 s{SWKV+1}, s71, s69")
    for b, p in ((SX, 64), (SWQ, 66), (SWO, 72), (SWS, 90), (SOUT, 86), (SDBG, 88), (SGATE, 84), (SREP, 80)):
        e(f"s_mov_b32 s{b}, s{p}")
        e(f"s_mov_b32 s{b+1}, s{p+1}")
    e(f"s_cmp_ge_u32 {s_w}, 8")
    e("s_cbranch_scc1 Lhelper")

S0, S1_, O_, P_, KM, KT, V0, V1, QM, QT = 16, 32, 48, 64, 72, 76, 80, 84, 88, 92
vK, vKt, vV, vStale = "v94", "v95", "v96", "v97"

def attn_phaseA():
    cm("===== attention wave: phase A (Q projection) =====")
    e(f"s_lshl_b32 s44, {s_rb}, 6")
    e(f"s_lshr_b32 s45, {s_w}, 1")
    e("s_lshl_b32 s45, s45, 4")
    e("s_add_u32 s44, s44, s45")
    e("v_lshrrev_b32 v11, 2, v0")
    e("v_add_u32 v11, s44, v11")
    e("s_movk_i32 s46, 1280")
    e("v_mul_lo_u32 v1, v11, s46")
    e("v_lshrrev_b32 v12, 4, v0")
    e("v_and_b32 v13, 3, v0")
    e("v_xor_b32 v12, v12, v13")
    e("v_lshlrev_b32 v12, 4, v12")
    e("v_add_u32 v1, v1, v12")
    e(f"s_and_b32 s45, {s_w}, 1")
    e("s_lshl_b32 s45, s45, 6")
    e("v_add_u32 v1, s45, v1")
    e("v_subrev_u32 v13, 40, v0")
    e("v_cmp_gt_u32 vcc, 40, v0")
    e("s_nop 1")
    e("v_cndmask_b32 v14, v13, v0, vcc")
    e("v_mul_u32_u24 v11, 26, v14")
    e("v_lshrrev_b32 v11, 8, v11")
    e("v_mul_u32_u24 v12, 10, v11")
    e("v_sub_u32 v12, v14, v12")
    e("v_lshrrev_b32 v13, 1, v11")
    e("v_and_b32 v11, 1, v11")
    e("v_lshlrev_b32 v11, 2, v11")
    e("v_add_u32 v11, v11, v13")
    e(f"s_lshl_b32 s44, {s_w}, 3")
    e("v_add_u32 v11, s44, v11")
    e("v_mul_lo_u32 v2, v11, s46")
    e("v_lshlrev_b32 v12, 4, v12")
    e("v_add_u32 v2, v2, v12")
    e(f"s_mul_i32 s45, {s_hg}, 160")
    e("v_add_u32 v2, s45, v2")
    e(f"s_lshl_b32 s47, {s_w}, 10")
    e(f"s_add_u32 s47, s47, {L_CH}")
    e(f"s_mul_i32 s48, {s_w}, 1280")
    e(f"s_add_u32 s48, s48, {L_CH+8192}")
    e("s_mov_b32 s50, -1")
    e("s_mov_b32 s51, 0xFF")
    for c in range(6):
        e(f"s_add_u32 m0, s47, {c*SLOT}")
        e(f"s_mov_b32 s49, {c*128}")
        e(f"buffer_load_dwordx4 v1, {S(SX)}, s49 offen lds")
        e("s_mov_b64 exec, s[50:51]")
        for i in range(2):
            e(f"s_add_u32 m0, s48, {c*SLOT + i*640}")
            e(f"s_mov_b32 s49, {c*81920 + i*2560}")
            e(f"buffer_load_dwordx4 v2, {S(SWQ)}, s49 offen lds")
        e("s_mov_b64 exec, -1")
    for c in range(6, 10):
        b = 16 + (c-6)*12
        e(f"s_mov_b32 s49, {c*128}")
        e(f"buffer_load_dwordx4 {vr(b,4)}, v1, {S(SX)}, s49 offen")
        for i in range(2):
            e(f"s_mov_b32 s49, {c*81920 + i*2560}")
            e(f"buffer_load_dwordx4 {vr(b+4+4*i,4)}, v2, {S(SWQ)}, s49 offen")
    e("v_lshlrev_b32 v3, 4, v0")
    e("v_add_u32 v3, s47, v3")
    e("v_lshlrev_b32 v4, 4, v14")
    e("v_add_u32 v4, s48, v4")
    e("v_and_b32 v11, 15, v0")
    e("v_lshrrev_b32 v12, 5, v0")
    e("v_lshrrev_b32 v13, 2, v11")
    e("v_xor_b32 v12, v12, v13")
    e("v_lshlrev_b32 v11, 2, v11")
    e("v_add_u32 v11, v11, v12")
    e("v_lshlrev_b32 v5, 4, v11")
    e("v_bfe_u32 v12, v0, 4, 1")
    e("v_lshlrev_b32 v12, 11, v12")
    e("v_add_u32 v5, v5, v12")
    e(f"s_lshr_b32 s44, {s_w}, 2")
    e("s_lshl_b32 s44, s44, 12")
    e(f"s_add_u32 s44, s44, {L_CH}")
    e("v_add_u32 v5, s44, v5")
    e("v_xor_b32 v6, 32, v5")
    e("v_lshrrev_b32 v11, 5, v0")
    e("v_lshlrev_b32 v11, 3, v11")
    e("v_bfe_u32 v12, v0, 2, 2")
    e("v_lshlrev_b32 v12, 1, v12")
    e("v_add_u32 v11, v11, v12")
    e("v_mul_u32_u24 v7, 160, v11")
    e("v_bfe_u32 v12, v0, 4, 1")
    e("v_lshlrev_b32 v12, 5, v12")
    e("v_add_u32 v7, v7, v12")
    e("v_and_b32 v12, 3, v0")
    e("v_lshlrev_b32 v12, 3, v12")
    e("v_add_u32 v7, v7, v12")
    e(f"s_and_b32 s44, {s_w}, 3")
    e("s_mul_i32 s44, s44, 40")
    e(f"s_add_u32 s44, s44, {L_CH+8192}")
    e("v_add_u32 v7, s44, v7")
    e(f"v_add_u32 v8, {3*SLOT}, v5")
    e(f"v_add_u32 v9, {3*SLOT}, v6")
    e(f"v_add_u32 v10, {3*SLOT}, v7")
    e(f"v_mov_b32 v11, {L_SYNC}")
    e("v_mov_b32 v12, 1")
    e("s_barrier")
    QA = 128
    first = [True]
    def reads(c, fb):
        slot = c % 6
        xe, xo, wa = ("v5", "v6", "v7") if slot < 3 else ("v8", "v9", "v10")
        so = (slot % 3) * SLOT
        for ks in range(4):
            b = fb + ks*8
            e(f"ds_read_b128 {vr(b,4)}, {xo if ks & 1 else xe} offset:{so + (ks>>1)*1024}")
            e(f"ds_read_b64_tr_b16 {vr(b+4,2)}, {wa} offset:{so + ks*2560}")
            e(f"ds_read_b64_tr_b16 {vr(b+6,2)}, {wa} offset:{so + ks*2560 + 160}")
    def mf(fb, nks, outstanding_after):
        for ks in range(nks):
            b = fb + ks*8
            e(f"s_waitcnt lgkmcnt({min(15, outstanding_after + 3*(nks-1-ks))})")
            e(f"v_mfma_f32_32x32x16_bf16 {vr(QA,16)}, {vr(b+4,4)}, {vr(b,4)}, {'0' if first[0] else vr(QA,16)}")
            first[0] = False
    def pair(c0):
        reads(c0, 64)
        reads(c0+1, 96)
        mf(64, 4, 12)
        mf(96, 4, 0)
    for p in range(2):
        e(f"s_waitcnt vmcnt({30 - 6*(p+1)})")
        lds_signal("v11", "v12", SY_ARR + 4*p)
        lds_wait("v11", "v13", SY_ARR + 4*p, 8)
        pair(2*p)
    lds_signal("v11", "v12", SY_S1)
    e("s_waitcnt vmcnt(12)")
    lds_signal("v11", "v12", SY_ARR + 8)
    lds_wait("v11", "v13", SY_ARR + 8, 8)
    reads(4, 64); mf(64, 4, 0)
    lds_wait("v11", "v13", SY_S1, 8)
    for c in range(6, 10):
        b = 16 + (c-6)*12
        e(f"s_waitcnt vmcnt({3*(9-c)})")
        so = (c-6)*SLOT
        e(f"ds_write_b128 v3, {vr(b,4)} offset:{so}")
        e(f"ds_write_b128 v4, {vr(b+4,4)} offset:{so}")
        e(f"ds_write_b128 v4, {vr(b+8,4)} offset:{so+640}")
    e("s_waitcnt lgkmcnt(0)")
    lds_signal("v11", "v12", SY_S2)
    reads(5, 64); mf(64, 4, 0)
    lds_wait("v11", "v13", SY_S2, 8)
    pair(6)
    pair(8)
    cm("Q finalize")
    e(f"s_mov_b32 s44, {f32(math.log2(math.e)/math.sqrt(20.0))}")
    e(f"v_lshlrev_b32 {vK}, 4, v0")
    e(f"v_lshlrev_b32 {vKt}, 2, v0")
    e(f"v_add_u32 {vKt}, 1024, {vKt}")
    e("v_and_b32 v11, 31, v0")
    e("v_min_u32 v11, 19, v11")
    e("v_lshrrev_b32 v12, 5, v0")
    e("v_mul_u32_u24 v12, 20, v12")
    e("v_add_u32 v11, v11, v12")
    e(f"v_lshlrev_b32 {vV}, 4, v11")
    e(f"v_add_u32 {vV}, 1280, {vV}")
    e("s_mov_b32 s45, 0x3F803F80")
    for i in range(8):
        e(f"v_mov_b32 v{V0+i}, s45")
    e("v_cmp_gt_u32 vcc, 32, v0")
    e("v_mov_b32 v11, 0x3F80")
    e("v_mov_b32 v12, 0")
    e(f"v_cndmask_b32 v{KT+1}, v12, v11, vcc")
    e(f"v_mov_b32 v{QT+1}, 0")
    for i in range(12):
        e(f"v_mul_f32 v{QA+i}, s44, v{QA+i}")
    for i in range(4):
        e(f"v_cvt_pk_bf16_f32 v{QM+i}, v{QA+2*i}, v{QA+2*i+1}")
    e(f"v_cvt_pk_bf16_f32 v{QT}, v{QA+8}, v{QA+9}")
    e(f"v_cvt_pk_bf16_f32 v98, v{QA+10}, v{QA+11}")
    for i in range(16):
        e(f"v_mov_b32 v{O_+i}, 0")
    e(f"v_permlane32_swap_b32 v{QT}, v98")
    if DEBUGQ:
        e("s_lshl_b32 s44, s2, 3")
        e(f"s_add_u32 s44, s44, {s_w}")
        e("s_mul_i32 s44, s44, 1536")
        e(f"s_add_u32 s44, s44, {QD}")
        e("v_lshlrev_b32 v11, 2, v0")
        for i in range(5):
            e(f"buffer_store_dword v{QM+i}, v11, {S(SWS)}, s44 offen offset:{256*i}")
    e("s_barrier")
    e("s_barrier")

def qk(Sn, first_zero=True):
    e(f"v_mfma_f32_32x32x8_bf16 {vr(Sn,16)}, {vr(KT,2)}, {vr(QT,2)}, 0")
    e(f"v_mfma_f32_32x32x16_bf16 {vr(Sn,16)}, {vr(KM,4)}, {vr(QM,4)}, {vr(Sn,16)}")

def rdK(t):
    e(f"ds_read_b128 {vr(KM,4)}, {vK} offset:{t*2560}")
    e(f"ds_read_b32 v{KT}, {vKt} offset:{t*2560}")
def rdV(t):
    e(f"s_mov_b64 exec, {s_vm}")
    e(f"ds_read_b128 {vr(V0,4)}, {vV} offset:{t*2560}")
    e(f"ds_read_b128 {vr(V1,4)}, {vV} offset:{t*2560+640}")
    e("s_mov_b64 exec, -1")

def tile_body(i, doQK=True, doK=True, doV=True):
    Sc = S0 if i % 2 == 0 else S1_
    Sn = S1_ if i % 2 == 0 else S0
    def ex(a, b):
        for k in range(a, b): e(f"v_exp_f32 v{Sc+k}, v{Sc+k}")
    def cv(k): e(f"v_cvt_pk_bf16_f32 v{P_+k}, v{Sc+2*k}, v{Sc+2*k+1}")
    if doQK:
        e("s_waitcnt lgkmcnt(2)")
        e(f"v_mfma_f32_32x32x8_bf16 {vr(Sn,16)}, {vr(KT,2)}, {vr(QT,2)}, 0")
    ex(0, 4)
    if doQK:
        e(f"v_mfma_f32_32x32x16_bf16 {vr(Sn,16)}, {vr(KM,4)}, {vr(QM,4)}, {vr(Sn,16)}")
    if doK: rdK(i+2)
    ex(4, 8)
    cv(0); cv(1)
    ex(8, 10)
    cv(2); cv(3)
    ex(10, 12)
    e(f"s_waitcnt lgkmcnt({2 if doK else 0})")
    e(f"v_mfma_f32_32x32x16_bf16 {vr(O_,16)}, {vr(V0,4)}, {vr(P_,4)}, {vr(O_,16)}")
    ex(12, 16)
    cv(4); cv(5); cv(6); cv(7)
    e("s_nop 1")
    e(f"v_mfma_f32_32x32x16_bf16 {vr(O_,16)}, {vr(V1,4)}, {vr(P_+4,4)}, {vr(O_,16)}")
    if doV: rdV(i+1)

def rowmax(Sx, dst, tmp):
    e(f"v_max3_f32 {dst}, v{Sx}, v{Sx+1}, v{Sx+2}")
    for k in range(3, 15, 2):
        e(f"v_max3_f32 {dst}, {dst}, v{Sx+k}, v{Sx+k+1}")
    e(f"v_max_f32 {dst}, {dst}, v{Sx+15}")

def halfmax(dst, tmp):
    e(f"v_mov_b32 {tmp}, {dst}")
    e("s_nop 1")
    e(f"v_permlane32_swap_b32 {tmp}, {dst}")
    e("s_nop 1")
    e(f"v_max_f32 {dst}, {dst}, {tmp}")

def attn_main():
    cm("===== attention main =====")
    e(f"s_lshl_b32 s44, {s_w}, 2")
    e("v_mov_b32 v98, s44")
    e(f"ds_read_b32 {vStale}, v98")
    rdK(0)
    e("s_waitcnt lgkmcnt(0)")
    qk(S0)
    e("s_nop 7"); e("s_nop 4")
    rowmax(S0, "v99", "v100")
    halfmax("v99", "v100")
    e("v_sub_f32 v99, 0, v99")
    e("v_mov_b32 v100, 0")
    e("v_cvt_pk_bf16_f32 v99, v99, v100")
    e("v_cmp_gt_u32 vcc, 32, v0")
    e("s_nop 1")
    e(f"v_cndmask_b32 v{QT+1}, v100, v99, vcc")
    e(f"v_not_b32 {vStale}, {vStale}")
    e("s_nop 0")
    qk(S0)
    rdK(1)
    rdV(0)
    e("s_mov_b32 s46, 0")
    e("s_nop 7")
    lab("Lattn_loop")
    for i in range(4):
        tile_body(i)
    for v in (vK, vKt, vV):
        e(f"v_add_u32 {v}, {4*2560}, {v}")
    e("s_add_u32 s46, s46, 1")
    e("s_cmp_eq_u32 s46, 3")
    e("s_cbranch_scc1 Lattn_b2")
    e("s_cmp_eq_u32 s46, 11")
    e("s_cbranch_scc1 Lattn_sig")
    e("s_cmp_lt_u32 s46, 15")
    e("s_cbranch_scc1 Lattn_loop")
    e("s_branch Lattn_tail")
    lab("Lattn_b2")
    e("s_barrier")
    e("s_branch Lattn_loop")
    lab("Lattn_sig")
    e(f"ds_write_b32 v98, {vStale}")
    e("s_waitcnt lgkmcnt(0)")
    e("s_branch Lattn_loop")
    lab("Lattn_tail")
    tile_body(0)
    tile_body(1)
    tile_body(2, doK=False)
    tile_body(3, doQK=False, doK=False, doV=False)
    e("s_nop 7"); e("s_nop 4")
    cm("check l range")
    e(f"s_mov_b32 s44, {f32(2.0**-30)}")
    e(f"s_mov_b32 s45, {f32(2.0**60)}")
    e(f"v_cmp_le_f32 s[46:47], s44, v{O_+12}")
    e(f"v_cmp_ge_f32 s[48:49], s45, v{O_+12}")
    e("s_and_b64 s[46:47], s[46:47], s[48:49]")
    e("s_cmp_eq_u64 s[46:47], -1")
    if FORCE_FB:
        e("s_branch Lfallback")
    else:
        e("s_cbranch_scc0 Lfallback")
    lab("Lattn_epi")
    e(f"v_rcp_f32 v98, v{O_+12}")
    e(f"s_lshl_b32 s44, {s_hg}, 2")
    e(f"s_and_b32 s45, {s_w}, 3")
    e("s_add_u32 s44, s44, s45")
    e("s_mul_i32 s44, s44, 5")
    e("v_lshrrev_b32 v99, 5, v0")
    e("v_add_u32 v99, s44, v99")
    e("v_lshrrev_b32 v100, 1, v99")
    e("v_lshlrev_b32 v100, 15, v100")
    e("v_and_b32 v99, 1, v99")
    e("v_lshlrev_b32 v99, 3, v99")
    e("v_add_u32 v100, v100, v99")
    e(f"s_lshl_b32 s44, {s_rb}, 6")
    e(f"s_lshr_b32 s45, {s_w}, 2")
    e("s_lshl_b32 s45, s45, 5")
    e("s_add_u32 s44, s44, s45")
    e("v_and_b32 v99, 31, v0")
    e("v_add_u32 v99, s44, v99")
    e("v_lshlrev_b32 v99, 4, v99")
    e("v_add_u32 v100, v100, v99")
    e(f"v_mov_b32 v101, {OOB}")
    e("v_cmp_gt_u32 vcc, 32, v0")
    for i in range(12):
        e(f"v_mul_f32 v{O_+i}, v98, v{O_+i}")
    e("v_cndmask_b32 v101, v101, v100, vcc")
    for i in range(6):
        e(f"v_cvt_pk_bf16_f32 v{P_+i}, v{O_+2*i}, v{O_+2*i+1}")
    e(f"s_mov_b32 s44, {OF}")
    e(f"s_mov_b32 s45, {OF+32768}")
    e(f"s_mov_b32 s46, {OF+65536}")
    e(f"buffer_store_dwordx2 {vr(P_,2)}, v100, {S(SWS)}, s44 offen sc1")
    e(f"buffer_store_dwordx2 {vr(P_+2,2)}, v100, {S(SWS)}, s45 offen sc1")
    e(f"buffer_store_dwordx2 {vr(P_+4,2)}, v101, {S(SWS)}, s46 offen sc1")
    e(f"s_lshl_b32 s44, {s_rb}, 7")
    e(f"s_add_u32 s44, s44, {CNT + C_O*128}")
    e("v_mov_b32 v98, s44")
    e("v_mov_b32 v99, 1")
    e("s_waitcnt vmcnt(0)")
    e("s_mov_b64 exec, 1")
    e(f"buffer_atomic_add v99, v98, {S(SWS)}, 0 offen sc1")
    e("s_mov_b64 exec, -1")

def attn_fallback():
    cm("===== fallback: true-max two-pass softmax reading K/V image from global =====")
    lab("Lfallback")
    e(f"v_lshlrev_b32 {vK}, 4, v0")
    e(f"v_lshlrev_b32 {vKt}, 2, v0")
    e(f"v_add_u32 {vKt}, 1024, {vKt}")
    e("v_and_b32 v98, 31, v0")
    e("v_min_u32 v98, 19, v98")
    e("v_lshrrev_b32 v99, 5, v0")
    e("v_mul_u32_u24 v99, 20, v99")
    e("v_add_u32 v98, v98, v99")
    e(f"v_lshlrev_b32 {vV}, 4, v98")
    e(f"v_add_u32 {vV}, 1280, {vV}")
    e(f"v_mov_b32 v{QT+1}, 0")
    e("v_mov_b32 v99, 0xff800000")
    e(f"s_mov_b32 s46, {KV}")
    lab("Lfb1")
    e(f"buffer_load_dwordx4 {vr(KM,4)}, {vK}, {S(SWS)}, s46 offen sc1")
    e(f"buffer_load_dword v{KT}, {vKt}, {S(SWS)}, s46 offen sc1")
    e("s_waitcnt vmcnt(0)")
    qk(S0)
    e("s_nop 7"); e("s_nop 4")
    rowmax(S0, "v100", None)
    e("v_max_f32 v99, v99, v100")
    e("s_add_u32 s46, s46, 2560")
    e(f"s_cmp_lt_u32 s46, {KV+163840}")
    e("s_cbranch_scc1 Lfb1")
    halfmax("v99", "v100")
    for i in range(16):
        e(f"v_mov_b32 v{O_+i}, 0")
    e(f"s_mov_b32 s46, {KV}")
    lab("Lfb2")
    e(f"buffer_load_dwordx4 {vr(KM,4)}, {vK}, {S(SWS)}, s46 offen sc1")
    e(f"buffer_load_dword v{KT}, {vKt}, {S(SWS)}, s46 offen sc1")
    e(f"s_mov_b64 exec, {s_vm}")
    e(f"buffer_load_dwordx4 {vr(V0,4)}, {vV}, {S(SWS)}, s46 offen sc1")
    e(f"buffer_load_dwordx4 {vr(V1,4)}, {vV}, {S(SWS)}, s46 offen offset:640 sc1")
    e("s_mov_b64 exec, -1")
    e("s_waitcnt vmcnt(0)")
    qk(S0)
    e("s_nop 7"); e("s_nop 4")
    for k in range(16):
        e(f"v_sub_f32 v{S0+k}, v{S0+k}, v99")
    for k in range(16):
        e(f"v_exp_f32 v{S0+k}, v{S0+k}")
    e("s_nop 0")
    for k in range(8):
        e(f"v_cvt_pk_bf16_f32 v{P_+k}, v{S0+2*k}, v{S0+2*k+1}")
    e("s_nop 1")
    e(f"v_mfma_f32_32x32x16_bf16 {vr(O_,16)}, {vr(V0,4)}, {vr(P_,4)}, {vr(O_,16)}")
    e(f"v_mfma_f32_32x32x16_bf16 {vr(O_,16)}, {vr(V1,4)}, {vr(P_+4,4)}, {vr(O_,16)}")
    e("s_add_u32 s46, s46, 2560")
    e(f"s_cmp_lt_u32 s46, {KV+163840}")
    e("s_nop 7")
    e("s_cbranch_scc1 Lfb2")
    e("s_nop 7"); e("s_nop 4")
    e("s_branch Lattn_epi")

def k3():
    cm("===== output projection (attention waves) =====")
    e(f"s_lshl_b32 s44, {s_rb}, 6")
    e(f"s_and_b32 s45, {s_w}, 3")
    e("s_lshl_b32 s45, s45, 4")
    e("s_add_u32 s44, s44, s45")
    e(f"s_lshr_b32 s47, {s_w}, 2")
    e("v_and_b32 v11, 15, v0")
    e("v_add_u32 v11, s44, v11")
    e("v_lshrrev_b32 v12, 4, v0")
    e("v_lshlrev_b32 v1, 15, v12")
    e("v_lshlrev_b32 v13, 4, v11")
    e("v_add_u32 v1, v1, v13")
    e(f"s_mul_i32 s48, s47, {40*32768}")
    e(f"s_add_u32 s48, s48, {OF}")
    e("v_bfe_u32 v13, v0, 2, 2")
    e("v_lshlrev_b32 v14, 3, v12")
    e("v_add_u32 v13, v13, v14")
    e("v_and_b32 v14, 1, v12")
    e("v_lshlrev_b32 v14, 2, v14")
    e("v_add_u32 v13, v13, v14")
    e("v_xor_b32 v14, 4, v13")
    e("v_mul_u32_u24 v2, 160, v13")
    e("v_mul_u32_u24 v3, 160, v14")
    e("v_and_b32 v13, 3, v0")
    e("v_lshlrev_b32 v13, 3, v13")
    e("s_mul_i32 s45, s47, 51200")
    e(f"s_add_u32 s45, s45, {L_WO}")
    e("v_add_u32 v13, s45, v13")
    e("v_add_u32 v2, v2, v13")
    e("v_add_u32 v3, v3, v13")
    e(f"s_movk_i32 s46, {YP}")
    e("v_mul_lo_u32 v4, v11, s46")
    e(f"s_mul_i32 s45, {s_hg}, 320")
    e("v_lshlrev_b32 v13, 4, v12")
    e("v_add_u32 v4, v4, v13")
    e("v_add_u32 v4, s45, v4")
    e("v_lshlrev_b32 v5, 2, v11")
    e("s_movk_i32 s46, 1280")
    e("v_mul_lo_u32 v6, v11, s46")
    e("v_lshlrev_b32 v13, 3, v12")
    e("v_add_u32 v6, v6, v13")
    e(f"s_mul_i32 s45, {s_hg}, 160")
    e("v_add_u32 v6, s45, v6")
    e(f"s_and_b32 s45, {s_w}, 3")
    e("s_mul_i32 s45, s45, 5120")
    e(f"s_add_u32 s45, s45, {L_RED}")
    e("v_lshlrev_b32 v7, 4, v0")
    e("v_add_u32 v7, s45, v7")
    e("s_barrier")
    OFR, ACC, AFR, YR = 16, 56, 76, 116
    for i in range(10):
        e(f"buffer_load_dwordx4 {vr(OFR+4*i,4)}, v1, {S(SWS)}, s48 offen sc1")
        if i < 9: e(f"s_add_u32 s48, s48, 131072")
    e("s_cmp_eq_u32 s47, 0")
    e("s_cbranch_scc0 Lk3_noy")
    e(f"s_mov_b32 s46, {YF}")
    for ct in range(5):
        e(f"buffer_load_dwordx4 {vr(YR+4*ct,4)}, v4, {S(SWS)}, s46 offen offset:{64*ct} sc1")
    e(f"s_mov_b32 s46, {G_}")
    e(f"buffer_load_dword v136, v5, {S(SWS)}, s46 offen sc1")
    def body(extra):
        def rd(i):
            b = AFR + (i & 1)*20
            for ct in range(5):
                e(f"ds_read_b64_tr_b16 {vr(b+4*ct,2)}, v2 offset:{i*5120 + ct*32}")
                e(f"ds_read_b64_tr_b16 {vr(b+4*ct+2,2)}, v3 offset:{i*5120 + ct*32}")
        rd(0)
        for i in range(10):
            if i < 9: rd(i+1)
            e(f"s_waitcnt vmcnt({9-i+extra}) lgkmcnt({10 if i < 9 else 0})")
            b = AFR + (i & 1)*20
            for ct in range(5):
                e(f"v_mfma_f32_16x16x32_bf16 {vr(ACC+4*ct,4)}, {vr(b+4*ct,4)}, {vr(OFR+4*i,4)}, {'0' if i == 0 else vr(ACC+4*ct,4)}")
    body(6)
    e("s_barrier")
    for ct in range(5):
        e(f"ds_read_b128 {vr(AFR+4*ct,4)}, v7 offset:{1024*ct}")
    e("s_waitcnt vmcnt(0)")
    for ct in range(5):
        e(f"s_waitcnt lgkmcnt({4-ct})")
        for r in range(4):
            a = ACC+4*ct+r; y = YR+4*ct+r
            e(f"v_add_f32 v{a}, v{a}, v{AFR+4*ct+r}")
            e(f"v_sub_f32 v{a}, v{a}, v{y}")
            e(f"v_fma_f32 v{a}, v136, v{a}, v{y}")
        e(f"v_cvt_pk_bf16_f32 v{OFR+2*ct}, v{ACC+4*ct}, v{ACC+4*ct+1}")
        e(f"v_cvt_pk_bf16_f32 v{OFR+2*ct+1}, v{ACC+4*ct+2}, v{ACC+4*ct+3}")
        e(f"buffer_store_dwordx2 {vr(OFR+2*ct,2)}, v6, {S(SOUT)}, 0 offen offset:{32*ct}")
    e("s_endpgm")
    lab("Lk3_noy")
    body(0)
    e("s_nop 7")
    for ct in range(5):
        e(f"ds_write_b128 v7, {vr(ACC+4*ct,4)} offset:{1024*ct}")
    e("s_waitcnt lgkmcnt(0)")
    e("s_barrier")
    e("s_endpgm")

def fold_compute(U, T, OUTR, vdst):
    e("s_mov_b32 s44, 0xffff0000")
    for i in range(4):
        for half in range(2):
            for k in range(4):
                if half == 0: e(f"v_lshlrev_b32 v{T+k}, 16, v{U+4*k+i}")
                else: e(f"v_and_b32 v{T+k}, s44, v{U+4*k+i}")
            e(f"v_add_f32 v{T+4}, v{T+0}, v{T+3}")
            e(f"v_add_f32 v{T+5}, v{T+1}, v{T+2}")
            e(f"v_sub_f32 v{T+6}, v{T+0}, v{T+3}")
            e(f"v_sub_f32 v{T+7}, v{T+2}, v{T+1}")
            o = T+8+4*half
            e(f"v_add_f32 v{o+0}, v{T+4}, v{T+5}")
            e(f"v_sub_f32 v{o+1}, v{T+4}, v{T+5}")
            e(f"v_add_f32 v{o+2}, v{T+6}, v{T+7}")
            e(f"v_sub_f32 v{o+3}, v{T+6}, v{T+7}")
        for a in range(4):
            e(f"v_cvt_pk_bf16_f32 v{OUTR+4*a+i}, v{T+8+a}, v{T+12+a}")
    for a in range(4):
        e(f"s_mov_b32 s44, {XF + a*XF_ARR}")
        e(f"buffer_store_dwordx4 {vr(OUTR+4*a,4)}, {vdst}, {S(SWS)}, s44 offen sc1")

def fold_addr(vs, vc, vact_mask_ready, o0, vdst, t1, t2):
    e("s_movk_i32 s46, 1280")
    e(f"v_lshlrev_b32 {t1}, 4, {vc}")
    e(f"v_mul_lo_u32 {t2}, {vs}, s46")
    e(f"v_add_u32 v{o0}, {t2}, {t1}")
    e(f"v_sub_u32 v{o0+1}, {t1}, {t2}")
    e(f"v_add_u32 v{o0+3}, {2048*1280}, v{o0+1}")
    e(f"v_add_u32 v{o0+1}, {1024*1280}, v{o0+1}")
    e(f"v_add_u32 v{o0+2}, {1024*1280}, v{o0}")
    e(f"v_lshrrev_b32 {t1}, 5, {vs}")
    e(f"v_mul_u32_u24 {t1}, 40, {t1}")
    e(f"v_lshrrev_b32 {t2}, 1, {vc}")
    e(f"v_add_u32 {t1}, {t1}, {t2}")
    e(f"v_lshlrev_b32 {vdst}, 10, {t1}")
    e(f"v_and_b32 {t1}, 1, {vc}")
    e(f"v_lshlrev_b32 {t1}, 9, {t1}")
    e(f"v_add_u32 {vdst}, {vdst}, {t1}")
    e(f"v_and_b32 {t1}, 0x13, {vs}")
    e(f"v_and_b32 {t2}, 4, {vs}")
    e(f"v_lshlrev_b32 {t2}, 1, {t2}")
    e(f"v_or_b32 {t1}, {t1}, {t2}")
    e(f"v_and_b32 {t2}, 8, {vs}")
    e(f"v_lshrrev_b32 {t2}, 1, {t2}")
    e(f"v_or_b32 {t1}, {t1}, {t2}")
    e(f"v_lshlrev_b32 {t1}, 4, {t1}")
    e(f"v_add_u32 {vdst}, {vdst}, {t1}")

def gpoll(vaddr, vtmp, srd, soff, nl, target, cmpv=None):
    a = uid("g"); d = uid("gd")
    e(f"s_mov_b64 exec, {(1<<nl)-1}")
    lab(a)
    e(f"buffer_load_dword {vtmp}, {vaddr}, {srd}, {soff} offen sc1")
    e("s_waitcnt vmcnt(0)")
    if cmpv: e(f"v_cmp_gt_u32 vcc, {cmpv}, {vtmp}")
    else: e(f"v_cmp_gt_u32 vcc, {target}, {vtmp}")
    e(f"s_cbranch_vccz {d}")
    spin_check(d)
    e("s_sleep 2")
    e(f"s_branch {a}")
    lab(d)
    e("s_mov_b64 exec, -1")

def helper():
    lab("Lhelper")
    cm("===== helper waves =====")
    XFR, GFR, WFR, ACC = 16, 36, 56, 72
    U, T, OUTR, RP = 84, 100, 116, 148
    e(f"s_lshl_b32 s54, {s_rb}, 6")
    e(f"s_and_b32 s44, {s_hg}, 3")
    e("s_lshl_b32 s44, s44, 4")
    e("s_add_u32 s54, s54, s44")
    e(f"s_mul_i32 s55, {s_hw}, 6400")
    e("v_lshlrev_b32 v1, 4, v0")
    e("v_add_u32 v2, s55, v1")
    e("s_mov_b32 m0, s55")
    e(f"v_mov_b32 v15, {L_SYNC}")
    for i in range(4):
        e(f"buffer_load_dwordx4 v2, {S(SWKV)}, 0 offen offset:{1024*i} lds")
    e("s_add_u32 m0, s55, 4096")
    e("s_movk_i32 s44, 4096")
    e(f"buffer_load_dwordx4 v2, {S(SWKV)}, s44 offen lds")
    e(f"buffer_load_dwordx4 v2, {S(SWKV)}, s44 offen offset:1024 lds")
    e("s_mov_b64 exec, 0xffff")
    e(f"buffer_load_dwordx4 v2, {S(SWKV)}, s44 offen offset:2048 lds")
    e("s_mov_b64 exec, -1")
    e("v_and_b32 v10, 15, v0")
    e("v_add_u32 v10, s54, v10")
    e("s_movk_i32 s46, 1280")
    e("v_mul_lo_u32 v3, v10, s46")
    e("v_lshrrev_b32 v11, 4, v0")
    e("v_lshlrev_b32 v4, 4, v11")
    e(f"s_mul_i32 s44, {s_hw}, 320")
    e("v_add_u32 v4, s44, v4")
    e("v_add_u32 v3, v3, v4")
    for i in range(5):
        e(f"buffer_load_dwordx4 {vr(XFR+4*i,4)}, v3, {S(SX)}, 0 offen offset:{64*i}")
    for i in range(5):
        e(f"buffer_load_dwordx4 {vr(GFR+4*i,4)}, v4, {S(SGATE)}, 0 offen offset:{64*i}")
    e("v_lshlrev_b32 v5, 3, v11")
    e("v_bfe_u32 v12, v0, 2, 2")
    e("v_add_u32 v5, v5, v12")
    e("v_mul_u32_u24 v5, 40, v5")
    e("v_and_b32 v12, 3, v0")
    e("v_lshlrev_b32 v12, 3, v12")
    e("v_add_u32 v5, v5, v12")
    e("v_add_u32 v5, s55, v5")
    e(f"s_mul_i32 s44, {s_hw}, 3072")
    e(f"s_add_u32 s44, s44, {L_PART}")
    e("v_add_u32 v6, s44, v1")
    e("v_mov_b32 v14, 1")
    e(f"v_mov_b32 v7, {OOB}")
    e(f"s_mov_b32 s56, {OOB}")
    e("s_mov_b32 s57, 0")
    e("s_mov_b32 s58, 0")
    e(f"s_cmp_eq_u32 {s_hw}, 3")
    e("s_cbranch_scc1 Lh3_pre")
    e(f"s_lshl_b32 s44, {s_hw}, 6")
    e("v_add_u32 v10, s44, v0")
    e("v_cmp_le_u32 vcc, 80, v10")
    e("v_subrev_u32 v11, 80, v10")
    e("s_lshl_b32 s44, s2, 1")
    e("v_mov_b32 v12, s44")
    e("v_cndmask_b32 v11, v10, v11, vcc")
    e("v_addc_co_u32 v12, vcc, 0, v12, vcc")
    fold_addr("v12", "v11", None, 132, "v7", "v8", "v9")
    e(f"v_mov_b32 v8, {OOB}")
    e("v_cmp_eq_u32 vcc, 0, v12")
    e("s_nop 1")
    e("v_cndmask_b32 v134, v134, v8, vcc")
    e("v_cmp_gt_u32 vcc, 160, v10")
    e("s_nop 1")
    for k in range(4):
        e(f"v_cndmask_b32 v{132+k}, v8, v{132+k}, vcc")
    e("v_cndmask_b32 v7, v8, v7, vcc")
    for k in range(4):
        e(f"buffer_load_dwordx4 {vr(U+4*k,4)}, v{132+k}, {S(SX)}, 0 offen")
    e(f"s_lshl_b32 s44, {s_hw}, 8")
    e("s_add_u32 s44, s44, s2")
    e("s_lshr_b32 s45, s44, 3")
    e("s_and_b32 s46, s44, 7")
    e("s_cmp_lt_u32 s45, 21")
    e("s_cbranch_scc0 Lrp_ws")
    e("s_cmp_lt_u32 s45, 11")
    e(f"s_cselect_b32 s{SREP}, s80, s82")
    e(f"s_cselect_b32 s{SREP+1}, s81, s83")
    e("s_cselect_b32 s47, 0, 11")
    e("s_sub_u32 s47, s45, s47")
    e("s_lshl_b32 s47, s47, 5")
    e("s_mul_i32 s47, s47, 1280")
    e("s_movk_i32 s48, 1280")
    e("s_mul_i32 s56, s45, 40960")
    e(f"s_add_u32 s56, s56, {WDF}")
    e("s_movk_i32 s57, 40")
    e("s_branch Lrp_go")
    lab("Lrp_ws")
    e("s_sub_u32 s45, s45, 21")
    e("s_cmp_ge_u32 s45, 33")
    e(f"s_cselect_b32 s{SREP}, s78, s76")
    e(f"s_cselect_b32 s{SREP+1}, s79, s77")
    e(f"s_mov_b32 s{SREP+2}, 8388608")
    e("s_cselect_b32 s47, 33, 0")
    e("s_sub_u32 s47, s45, s47")
    e("s_mul_i32 s56, s45, 33792")
    e(f"s_add_u32 s56, s56, {WSF}")
    e("s_lshl_b32 s48, s47, 6")
    e("s_cmp_ge_u32 s47, 16")
    e("s_cselect_b32 s49, 1023, 0")
    e("s_sub_u32 s48, s48, s49")
    e("s_cmp_eq_u32 s47, 32")
    e("s_cselect_b32 s47, 1024, s48")
    e("s_lshl_b32 s47, s47, 12")
    e("s_movk_i32 s48, 8192")
    e("s_cmp_lt_u32 s45, 65")
    e("s_cselect_b32 s57, 33, 0")
    e("s_cselect_b32 s47, s47, 0")
    lab("Lrp_go")
    e("v_and_b32 v8, 31, v0")
    e("v_mul_lo_u32 v8, v8, s48")
    e("v_lshrrev_b32 v9, 5, v0")
    e("v_lshlrev_b32 v9, 4, v9")
    e("v_add_u32 v8, v8, v9")
    e("s_lshl_b32 s44, s46, 5")
    e("s_add_u32 s47, s47, s44")
    e("v_add_u32 v8, s47, v8")
    for i in range(5):
        e(f"buffer_load_dwordx4 {vr(RP+4*i,4)}, v8, {S(SREP)}, 0 offen offset:{256*i}")
    e("s_mov_b32 s58, s46")
    e("s_barrier")
    e("s_waitcnt vmcnt(9)")
    e("s_branch Lh_kv")
    lab("Lh3_pre")
    e("v_mov_b32 v10, 0")
    e("v_mov_b32 v11, 0")
    e("v_mov_b32 v12, 0")
    e("v_mov_b32 v13, 0")
    e("ds_write_b128 v15, v[10:13]")
    e("ds_write_b128 v15, v[10:13] offset:16")
    e("s_lshl_b32 s44, s2, 7")
    e(f"s_add_u32 s44, s44, {CNT}")
    e(f"s_cmp_lt_u32 s2, {NCNT}")
    e(f"s_cselect_b32 s44, s44, {OOB}")
    e("v_mov_b32 v11, s44")
    e("s_mov_b64 exec, 1")
    e(f"buffer_store_dword v10, v11, {S(SWS)}, 0 offen sc1")
    e("s_mov_b64 exec, -1")
    e("s_waitcnt lgkmcnt(0)")
    e("s_barrier")
    e("s_waitcnt vmcnt(1)")
    lab("Lh_kv")
    cm("K/V partial products")
    e(f"s_cmp_ge_u32 {s_hg}, 4")
    e("s_cbranch_scc1 Lh_vtype")
    for typ in range(2):
        if typ == 1: lab("Lh_vtype")
        def rd(i):
            b = WFR + (i & 1)*8
            for t in range(2):
                e(f"ds_read_b64_tr_b16 {vr(b+4*t,2)}, v5 offset:{i*1280 + t*32}")
                e(f"ds_read_b64_tr_b16 {vr(b+4*t+2,2)}, v5 offset:{i*1280 + 160 + t*32}")
        rd(0)
        for i in range(5):
            if i < 4: rd(i+1)
            e(f"s_waitcnt lgkmcnt({4 if i < 4 else 0})")
            b = WFR + (i & 1)*8
            for t in range(2):
                cin = '0' if i == 0 else vr(ACC+4*t,4)
                if typ == 0:
                    e(f"v_mfma_f32_16x16x32_bf16 {vr(ACC+4*t,4)}, {vr(b+4*t,4)}, {vr(XFR+4*i,4)}, {cin}")
                else:
                    e(f"v_mfma_f32_16x16x32_bf16 {vr(ACC+4*t,4)}, {vr(XFR+4*i,4)}, {vr(b+4*t,4)}, {cin}")
            cin = '0' if i == 0 else vr(ACC+8,4)
            e(f"v_mfma_f32_16x16x32_bf16 {vr(ACC+8,4)}, {vr(XFR+4*i,4)}, {vr(GFR+4*i,4)}, {cin}")
        if typ == 0: e("s_branch Lh_part")
    lab("Lh_part")
    e("s_nop 7")
    for t in range(3):
        e(f"ds_write_b128 v6, {vr(ACC+4*t,4)} offset:{1024*t}")
    e("s_waitcnt lgkmcnt(0)")
    lds_signal("v15", "v14", SY_KVP)
    e(f"s_cmp_eq_u32 {s_hw}, 3")
    e("s_cbranch_scc1 Lh3_red")
    e("s_waitcnt vmcnt(5)")
    fold_compute(U, T, OUTR, "v7")
    for i in range(5):
        e(f"s_add_u32 s44, s58, {8*i}")
        e("s_cmp_lt_u32 s44, s57")
        e(f"s_cselect_b32 s45, s56, {OOB}")
        e("s_lshl_b32 s44, s44, 10")
        e("s_add_u32 s44, s44, s45")
        e("s_waitcnt vmcnt(8)")
        e(f"buffer_store_dwordx4 {vr(RP+4*i,4)}, v1, {S(SWS)}, s44 offen sc1")
    lds_wait("v15", "v13", SY_KVRDY, 1)
    e("s_branch Lh_kvload")
    lab("Lh3_red")
    lds_wait("v15", "v13", SY_KVP, 4)
    RD = 84
    e(f"v_add_u32 v6, {L_PART}, v1")
    for h in range(4):
        for t in range(3):
            e(f"ds_read_b128 {vr(RD+12*h+4*t,4)}, v6 offset:{h*3072 + t*1024}")
    e("s_lshr_b32 s44, s54, 5")
    e("s_mul_i32 s44, s44, 2560")
    e(f"s_add_u32 s44, s44, {KV}")
    e("s_bfe_u32 s45, s54, 0x10004")
    e("v_and_b32 v10, 15, v0")
    e("v_lshrrev_b32 v11, 4, v0")
    e("v_and_b32 v12, 1, v11")
    e("v_lshrrev_b32 v13, 1, v11")
    e("v_lshlrev_b32 v13, 3, v13")
    e(f"v_mov_b32 v9, {OOB}")
    e("s_waitcnt lgkmcnt(0)")
    for k in range(12):
        e(f"v_add_f32 v{RD+k}, v{RD+k}, v{RD+12+k}")
        e(f"v_add_f32 v{RD+24+k}, v{RD+24+k}, v{RD+36+k}")
    for k in range(12):
        e(f"v_add_f32 v{RD+k}, v{RD+k}, v{RD+24+k}")
    for k in range(4):
        e(f"v_cvt_pk_bf16_f32 v{ACC+k}, v{RD+2*k}, v{RD+2*k+1}")
    e(f"s_cmp_ge_u32 {s_hg}, 4")
    e("s_cbranch_scc1 Lh3_v")
    e("s_lshl_b32 s45, s45, 4")
    e("v_add_u32 v10, s45, v10")
    e("v_lshlrev_b32 v12, 5, v12")
    e("v_add_u32 v12, v12, v10")
    e("v_lshlrev_b32 v12, 4, v12")
    e("v_add_u32 v12, v12, v13")
    e("v_cmp_gt_u32 vcc, 16, v0")
    e("v_lshlrev_b32 v10, 2, v10")
    e(f"buffer_store_dwordx2 {vr(ACC,2)}, v12, {S(SWS)}, s44 offen sc1")
    e("v_cndmask_b32 v10, v9, v10, vcc")
    e(f"buffer_store_dword v{ACC+2}, v10, {S(SWS)}, s44 offen offset:1024 sc1")
    e(f"buffer_store_dword v{ACC+3}, v10, {S(SWS)}, s44 offen offset:1152 sc1")
    e("s_branch Lh3_arrive")
    lab("Lh3_v")
    e("s_mul_i32 s45, s45, 640")
    e("s_add_u32 s44, s44, s45")
    e("v_mul_u32_u24 v12, 20, v12")
    e("v_add_u32 v12, v12, v10")
    e("v_lshlrev_b32 v12, 4, v12")
    e("v_cmp_gt_u32 vcc, 4, v10")
    e("v_add_u32 v12, v12, v13")
    e(f"buffer_store_dwordx2 {vr(ACC,2)}, v12, {S(SWS)}, s44 offen offset:1280 sc1")
    e("v_cndmask_b32 v12, v9, v12, vcc")
    e(f"buffer_store_dwordx2 {vr(ACC+2,2)}, v12, {S(SWS)}, s44 offen offset:{1280+256} sc1")
    e(f"s_mov_b32 s45, {f32(-math.log2(math.e))}")
    for r in range(4):
        e(f"v_mul_f32 v{RD+8+r}, s45, v{RD+8+r}")
    for r in range(4):
        e(f"v_exp_f32 v{RD+8+r}, v{RD+8+r}")
    e("v_lshlrev_b32 v11, 4, v11")
    for r in range(4):
        e(f"v_add_f32 v{RD+8+r}, 1.0, v{RD+8+r}")
    e("v_cmp_eq_u32 vcc, 0, v10")
    for r in range(4):
        e(f"v_rcp_f32 v{RD+8+r}, v{RD+8+r}")
    e("v_cndmask_b32 v11, v9, v11, vcc")
    e("s_lshl_b32 s45, s54, 2")
    e(f"s_add_u32 s45, s45, {G_}")
    e(f"buffer_store_dwordx4 {vr(RD+8,4)}, v11, {S(SWS)}, s45 offen sc1")
    lab("Lh3_arrive")
    e("s_and_b32 s44, s2, 3")
    e("s_lshl_b32 s44, s44, 6")
    e("v_mov_b32 v10, s44")
    e("s_waitcnt vmcnt(0)")
    e("s_mov_b64 exec, 1")
    e(f"buffer_atomic_add v14, v10, {S(SDBG)}, 0 offen sc1")
    e("s_mov_b64 exec, -1")
    e("s_cmp_ge_u32 s2, 64")
    e("s_cbranch_scc1 Lh3_poll")
    e("s_lshr_b32 s44, s2, 1")
    e("s_add_u32 s44, s44, 512")
    e("v_mov_b32 v12, s44")
    e("s_and_b32 s45, s2, 1")
    e("s_mul_i32 s45, s45, 40")
    e("v_add_u32 v11, s45, v0")
    fold_addr("v12", "v11", None, 132, "v7", "v8", "v9")
    e(f"v_mov_b32 v8, {OOB}")
    e("v_mov_b32 v133, v8")
    e("v_mov_b32 v134, v8")
    e("v_cmp_gt_u32 vcc, 40, v0")
    e("s_nop 1")
    e("v_cndmask_b32 v7, v8, v7, vcc")
    e("s_cmp_eq_u32 s44, 512")
    e("s_cselect_b64 s[46:47], vcc, 0")
    e(f"v_cndmask_b32 v132, v8, v132, s[46:47]")
    e(f"v_cndmask_b32 v135, v8, v135, s[46:47]")
    for k in range(4):
        e(f"buffer_load_dwordx4 {vr(U+4*k,4)}, v{132+k}, {S(SX)}, 0 offen")
    e("s_waitcnt vmcnt(0)")
    fold_compute(U, T, OUTR, "v7")
    lab("Lh3_poll")
    e("v_lshlrev_b32 v10, 6, v0")
    gpoll("v10", "v11", S(SDBG), "0", 4, 64)
    e(f"ds_write_b32 v15, v14 offset:{SY_KVRDY}")
    lab("Lh_kvload")
    cm("KV image -> LDS ; piece p = 4*i + hw")
    X, Y = 16, 60
    e(f"s_lshl_b32 s44, {s_hw}, 10")
    e("v_add_u32 v2, s44, v1")
    e("v_add_u32 v3, 0x10000, v2")
    e("v_add_u32 v4, 0x20000, v2")
    batches = [(0, 9, X), (9, 11, Y), (20, 10, X), (30, 10, Y)]
    def kvld(bi):
        i0, n, R = batches[bi]
        for k in range(n):
            e(f"s_mov_b32 s44, {KV + (i0+k)*4096}")
            e(f"buffer_load_dwordx4 {vr(R+4*k,4)}, v2, {S(SWS)}, s44 offen sc1")
    def kvwr(bi, later):
        i0, n, R = batches[bi]
        for k in range(n):
            off = (i0+k)*4096
            va = "v2" if off < 0x10000 else ("v3" if off < 0x20000 else "v4")
            e(f"s_waitcnt vmcnt({later + n-1-k})")
            e(f"ds_write_b128 {va}, {vr(R+4*k,4)} offset:{off & 0xffff}")
    kvld(0); kvld(1)
    e("s_waitcnt vmcnt(19)")
    e("s_mov_b64 exec, 1")
    e(f"ds_add_rtn_u32 v13, v15, v14 offset:{SY_PREP}")
    e("s_mov_b64 exec, -1")
    e("s_waitcnt lgkmcnt(0)")
    e("v_readfirstlane_b32 s59, v13")
    e("s_barrier")
    kvwr(0, 11)
    e("s_waitcnt lgkmcnt(0)")
    e("s_barrier")
    e("v_and_b32 v9, 7, v0")
    e("v_lshlrev_b32 v9, 2, v9")
    e("ds_read_b32 v8, v9")
    kvld(2)
    kvwr(1, 10)
    e("s_waitcnt lgkmcnt(0)")
    kvld(3)
    kvwr(2, 10)
    kvwr(3, 0)
    e("s_cmp_eq_u32 s59, 3")
    e("s_cbranch_scc0 Lh_noprep")
    e("s_and_b32 s44, s2, 7")
    e("s_lshl_b32 s44, s44, 7")
    e(f"s_add_u32 s44, s44, {CNT + C_PREP*128}")
    e("v_mov_b32 v10, s44")
    e("s_mov_b64 exec, 1")
    e(f"buffer_atomic_add v14, v10, {S(SWS)}, 0 offen sc1")
    e("s_mov_b64 exec, -1")
    lab("Lh_noprep")
    e("s_waitcnt lgkmcnt(0)")
    e("v_not_b32 v8, v8")
    e("s_barrier")
    e(f"s_cmp_ge_u32 {s_hw}, 2")
    e("s_cbranch_scc1 Lh_stage2")
    stage1()
    wo_prefetch()
    lab("Lh_stage2")
    stage2()
    lab("Lh_b3")
    e("s_barrier")
    e("s_endpgm")

def prep_wait():
    e("v_lshlrev_b32 v10, 7, v0")
    e(f"s_mov_b32 s44, {CNT + C_PREP*128}")
    gpoll("v10", "v11", S(SWS), "s44", 8, 32)

def stage1():
    cm("===== FNet stage 1 =====")
    e(f"s_lshl_b32 s44, {s_idx}, 1")
    e(f"s_add_u32 s44, s44, {s_hw}")
    e("s_cmp_ge_u32 s44, 42")
    e("s_cbranch_scc1 Ls1_x")
    e("s_cmp_ge_u32 s44, 21")
    e("s_cselect_b32 s45, 8, 0")
    e("s_cselect_b32 s46, 21, 0")
    e(f"s_add_u32 s45, s45, {s_xcd}")
    e("s_sub_u32 s46, s44, s46")
    e("s_branch Ls1_go")
    lab("Ls1_x")
    e("s_cmp_ge_u32 s44, 45")
    e("s_cbranch_scc1 Ls1_done")
    e("s_movk_i32 s45, 16")
    e(f"s_mul_i32 s46, {s_xcd}, 3")
    e("s_add_u32 s46, s46, s44")
    e("s_sub_u32 s46, s46, 42")
    e("s_cmp_ge_u32 s46, 21")
    e("s_cbranch_scc1 Ls1_done")
    lab("Ls1_go")
    e("s_mov_b32 s60, s45")
    e("s_mov_b32 s61, s46")
    prep_wait()
    e("s_cmp_ge_u32 s61, 11")
    e("s_cselect_b32 s47, 2, 0")
    e("s_cselect_b32 s48, 11, 0")
    e("s_sub_u32 s48, s61, s48")
    e("s_mul_i32 s49, s47, 17")
    e("s_add_u32 s49, s49, s60")
    e("s_mul_i32 s49, s49, 40960")
    e(f"s_add_u32 s49, s49, {XF}")
    e(f"s_add_u32 s50, s49, {XF_ARR}")
    e("s_mul_i32 s51, s61, 40960")
    e(f"s_add_u32 s51, s51, {WDF}")
    D = 8; B0 = 16; AE, AO = 112, 128
    def ld(ks):
        b = B0 + (ks % D)*12
        if ks and ks % 4 == 0:
            for s in ("s49", "s50", "s51"): e(f"s_add_u32 {s}, {s}, 4096")
        o = (ks % 4)*1024
        e(f"buffer_load_dwordx4 {vr(b,4)}, v1, {S(SWS)}, s51 offen offset:{o} sc1")
        e(f"buffer_load_dwordx4 {vr(b+4,4)}, v1, {S(SWS)}, s49 offen offset:{o} sc1")
        e(f"buffer_load_dwordx4 {vr(b+8,4)}, v1, {S(SWS)}, s50 offen offset:{o} sc1")
    for ks in range(D): ld(ks)
    for ks in range(40):
        rem = min(D-1, 39-ks)
        e(f"s_waitcnt vmcnt({3*rem})")
        b = B0 + (ks % D)*12
        e(f"v_mfma_f32_32x32x16_bf16 {vr(AE,16)}, {vr(b+4,4)}, {vr(b,4)}, {'0' if ks == 0 else vr(AE,16)}")
        e(f"v_mfma_f32_32x32x16_bf16 {vr(AO,16)}, {vr(b+8,4)}, {vr(b,4)}, {'0' if ks == 0 else vr(AO,16)}")
        if ks + D < 40: ld(ks + D)
    e("s_mul_i32 s49, s47, 11")
    e("s_add_u32 s49, s49, s48")
    e("s_mul_i32 s49, s49, 34")
    e("s_lshl_b32 s50, s60, 1")
    e("s_add_u32 s49, s49, s50")
    e("s_lshl_b32 s49, s49, 10")
    e(f"s_add_u32 s49, s49, {AF}")
    e(f"s_add_u32 s50, s49, {AF_ARR}")
    e("s_lshl_b32 s48, s48, 7")
    e(f"s_add_u32 s48, s48, {CNT + C_S1*128}")
    e("v_mov_b32 v10, s48")
    e("s_nop 4")
    for p, A in enumerate((AE, AO)):
        for k in range(8):
            e(f"v_cvt_pk_bf16_f32 v{B0+8*p+k}, v{A+2*k}, v{A+2*k+1}")
        for u in range(2):
            e(f"buffer_store_dwordx4 {vr(B0+8*p+4*u,4)}, v1, {S(SWS)}, {'s49' if p == 0 else 's50'} offen offset:{1024*u} sc1")
    e("s_waitcnt vmcnt(0)")
    e("s_mov_b64 exec, 1")
    e(f"buffer_atomic_add v14, v10, {S(SWS)}, 0 offen sc1")
    e("s_mov_b64 exec, -1")
    lab("Ls1_done")

def wo_prefetch():
    cm("===== wo prefetch into retired KV tiles =====")
    e(f"s_mul_i32 s45, {s_hg}, 160")
    e("s_movk_i32 s46, 1280")
    e("s_movk_i32 s47, 205")
    for i in range(5):
        e(f"v_add_u32 v10, {64*i}, v0")
        e("v_mul_lo_u32 v11, v10, s47")
        e("v_lshrrev_b32 v11, 11, v11")
        e("v_mul_u32_u24 v12, 10, v11")
        e("v_sub_u32 v12, v10, v12")
        e("v_and_b32 v13, 8, v11")
        e("v_lshrrev_b32 v13, 1, v13")
        e("v_xor_b32 v11, v11, v13")
        e(f"v_mul_lo_u32 v{16+i}, v11, s46")
        e("v_lshlrev_b32 v12, 4, v12")
        e(f"v_add_u32 v{16+i}, v{16+i}, v12")
        e(f"v_add_u32 v{16+i}, s45, v{16+i}")
    a = uid("p"); d = uid("pd")
    lab(a)
    e("ds_read_b32 v10, v9")
    e("s_waitcnt lgkmcnt(0)")
    e("v_cmp_ne_u32 vcc, v10, v8")
    e(f"s_cbranch_vccz {d}")
    spin_check(d)
    e("s_sleep 8")
    e(f"s_branch {a}")
    lab(d)
    e(f"s_mul_i32 s44, {s_hw}, {10*5120}")
    e(f"s_add_u32 s44, s44, {L_WO}")
    e(f"s_mul_i32 s45, {s_hw}, {10*40960}")
    for g in range(10):
        for i in range(5):
            e(f"s_add_u32 m0, s44, {g*5120 + i*1024}")
            if i == 0 and g: e("s_add_u32 s45, s45, 40960")
            else: e("s_nop 0")
            e(f"buffer_load_dwordx4 v{16+i}, {S(SWO)}, s45 offen lds")
    e(f"s_cmp_eq_u32 {s_hw}, 0")
    e("s_cbranch_scc0 Lwo_done")
    e(f"s_lshl_b32 s44, {s_rb}, 7")
    e(f"s_add_u32 s44, s44, {CNT + C_Y*128}")
    e(f"v_mul_u32_u24 v10, {32*128}, v0")
    e(f"s_cmp_ge_u32 {s_rb}, 16")
    e("s_cselect_b32 s45, 33, 22")
    e("v_mov_b32 v12, 64")
    e("v_mov_b32 v13, s45")
    e("v_cmp_eq_u32 vcc, 0, v0")
    e("s_nop 1")
    e("v_cndmask_b32 v12, v12, v13, vcc")
    gpoll("v10", "v11", S(SWS), "s44", 2, None, cmpv="v12")
    lab("Lwo_done")
    e("s_waitcnt vmcnt(0)")
    e("s_branch Lh_b3")

def stage2():
    cm("===== FNet stage 2 =====")
    e(f"s_lshl_b32 s44, {s_idx}, 1")
    e(f"s_add_u32 s44, s44, {s_hw}")
    e("s_sub_u32 s44, s44, 2")
    e("s_cmp_ge_u32 s44, 44")
    e("s_cbranch_scc1 Ls2_x")
    e("s_mul_i32 s45, s44, 47")
    e("s_lshr_b32 s45, s45, 9")
    e("s_mul_i32 s46, s45, 11")
    e("s_sub_u32 s61, s44, s46")
    e(f"s_lshl_b32 s60, {s_xcd}, 2")
    e("s_add_u32 s60, s60, s45")
    e("s_branch Ls2_go")
    lab("Ls2_x")
    e("s_cmp_ge_u32 s44, 46")
    e("s_cbranch_scc1 Lh_b3")
    e("s_movk_i32 s60, 32")
    e(f"s_lshl_b32 s61, {s_xcd}, 1")
    e("s_add_u32 s61, s61, s44")
    e("s_sub_u32 s61, s61, 44")
    e("s_cmp_ge_u32 s61, 11")
    e("s_cbranch_scc1 Lh_b3")
    lab("Ls2_go")
    prep_wait()
    e("s_lshl_b32 s44, s61, 7")
    e(f"s_add_u32 s44, s44, {CNT + C_S1*128}")
    e("s_cmp_eq_u32 s61, 10")
    e("s_cselect_b32 s45, 17, 34")
    e("v_mov_b32 v10, 0")
    gpoll("v10", "v11", S(SWS), "s44", 1, "s45")
    e("s_bfe_u32 s47, s60, 0x10004")
    e("s_mul_i32 s49, s47, 11")
    e("s_add_u32 s49, s49, s61")
    e(f"s_mul_i32 s49, s49, {34*1024}")
    e(f"s_add_u32 s49, s49, {AF}")
    e(f"s_add_u32 s50, s49, {2*AF_ARR}")
    e("s_mul_i32 s51, s60, 33792")
    e(f"s_add_u32 s51, s51, {WSF}")
    e(f"s_add_u32 s52, s51, {33*33792}")
    e("s_lshl_b32 s44, s60, 6")
    e("s_cmp_ge_u32 s60, 16")
    e("s_cselect_b32 s45, 1023, 0")
    e("s_sub_u32 s44, s44, s45")
    e("s_cmp_eq_u32 s60, 32")
    e("s_cselect_b32 s44, 1024, s44")
    e("v_and_b32 v10, 31, v0")
    e("v_lshlrev_b32 v2, 1, v10")
    e("v_add_u32 v2, s44, v2")
    e(f"s_movk_i32 s46, {YP}")
    e("v_mul_lo_u32 v3, v2, s46")
    e(f"v_sub_u32 v4, {2048*YP}, v3")
    e("s_cselect_b32 s45, 1, 32")
    e("v_cmp_gt_u32 vcc, s45, v10")
    e(f"v_mov_b32 v11, {OOB}")
    e("v_lshrrev_b32 v12, 5, v0")
    e("v_cndmask_b32 v3, v11, v3, vcc")
    e("v_cndmask_b32 v4, v11, v4, vcc")
    e("v_lshlrev_b32 v12, 4, v12")
    e("s_lshl_b32 s45, s61, 7")
    e("v_add_u32 v12, s45, v12")
    e(f"v_sub_u32 v13, {(640-3)*4 - 96}, v12")
    e("v_add_u32 v5, v3, v13")
    e("v_add_u32 v6, v4, v13")
    e("v_add_u32 v3, v3, v12")
    e("v_add_u32 v4, v4, v12")
    e("s_and_b32 s44, s60, 15")
    e("s_sub_u32 s45, 31, s44")
    e("s_sub_u32 s46, 32, s44")
    e("s_cmp_eq_u32 s60, 0")
    e(f"s_cselect_b32 s46, {OOB>>7}, s46")
    e("s_cmp_ge_u32 s60, 16")
    e(f"s_cselect_b32 s46, {OOB>>7}, s46")
    e("s_cmp_eq_u32 s60, 32")
    e("s_cselect_b32 s44, 16, s44")
    e(f"s_cselect_b32 s45, {OOB>>7}, s45")
    e("v_mov_b32 v7, s44")
    e("v_writelane_b32 v7, s45, 1")
    e("v_writelane_b32 v7, s46, 2")
    e("v_lshlrev_b32 v7, 7, v7")
    e("s_cmp_eq_u32 s60, 32")
    e("s_cbranch_scc1 Ls2_nor")
    e("s_cmp_eq_u32 s61, 10")
    e("s_cbranch_scc1 Ls2_nor")
    B0 = 16; PA, RA = 112, 128
    for withR in (True, False):
        if not withR: lab("Ls2_nor")
        D = 6 if withR else 12
        W = 16 if withR else 8
        nl = 4 if withR else 2
        def ld(ks):
            b = B0 + (ks % D)*W
            if ks and ks % 4 == 0:
                for s in (("s49", "s50", "s51", "s52") if withR else ("s49", "s51")):
                    e(f"s_add_u32 {s}, {s}, 4096")
            o = (ks % 4)*1024
            e(f"buffer_load_dwordx4 {vr(b,4)}, v1, {S(SWS)}, s49 offen offset:{o} sc1")
            e(f"buffer_load_dwordx4 {vr(b+4,4)}, v1, {S(SWS)}, s51 offen offset:{o} sc1")
            if withR:
                e(f"buffer_load_dwordx4 {vr(b+8,4)}, v1, {S(SWS)}, s50 offen offset:{o} sc1")
                e(f"buffer_load_dwordx4 {vr(b+12,4)}, v1, {S(SWS)}, s52 offen offset:{o} sc1")
        for ks in range(D): ld(ks)
        for ks in range(33):
            rem = min(D-1, 32-ks)
            e(f"s_waitcnt vmcnt({nl*rem})")
            b = B0 + (ks % D)*W
            e(f"v_mfma_f32_32x32x16_bf16 {vr(PA,16)}, {vr(b,4)}, {vr(b+4,4)}, {'0' if ks == 0 else vr(PA,16)}")
            if withR:
                e(f"v_mfma_f32_32x32x16_bf16 {vr(RA,16)}, {vr(b+8,4)}, {vr(b+12,4)}, {'0' if ks == 0 else vr(RA,16)}")
            if ks + D < 33: ld(ks + D)
        e(f"s_mov_b32 s44, {YF}")
        e("s_nop 7"); e("s_nop 3")
        if not withR:
            for k in range(16): e(f"v_mov_b32 v{RA+k}, 0")
            e("s_cmp_eq_u32 s61, 10")
            e("s_cbranch_scc1 Ls2_e320")
        else:
            lab("Ls2_store")
            Y1, Y2, Y1r, Y2r = 16, 32, 48, 64
            for q in range(4):
                for i in range(4):
                    k = 4*q+i
                    e(f"v_sub_f32 v{Y1+k}, v{PA+k}, v{RA+k}")
                    e(f"v_add_f32 v{Y2+k}, v{PA+k}, v{RA+k}")
                    e(f"v_sub_f32 v{Y1r+4*q+3-i}, v{PA+k}, v{RA+k}")
                    e(f"v_add_f32 v{Y2r+4*q+3-i}, v{PA+k}, v{RA+k}")
                e(f"buffer_store_dwordx4 {vr(Y1+4*q,4)}, v3, {S(SWS)}, s44 offen offset:{32*q} sc1")
                e(f"buffer_store_dwordx4 {vr(Y2+4*q,4)}, v4, {S(SWS)}, s44 offen offset:{32*q} sc1")
                e(f"buffer_store_dwordx4 {vr(Y2r+4*q,4)}, v5, {S(SWS)}, s44 offen offset:{96-32*q} sc1")
                e(f"buffer_store_dwordx4 {vr(Y1r+4*q,4)}, v6, {S(SWS)}, s44 offen offset:{96-32*q} sc1")
            e("s_branch Ls2_fin")
    e("s_branch Ls2_store")
    lab("Ls2_e320")
    e("s_mov_b32 exec_hi, 0")
    e(f"buffer_store_dword v{PA}, v3, {S(SWS)}, s44 offen sc1")
    e(f"buffer_store_dword v{PA}, v4, {S(SWS)}, s44 offen sc1")
    e("s_mov_b64 exec, -1")
    lab("Ls2_fin")
    e(f"s_mov_b32 s44, {CNT + C_Y*128}")
    e("s_waitcnt vmcnt(0)")
    e("s_mov_b64 exec, 7")
    e(f"buffer_atomic_add v14, v7, {S(SWS)}, s44 offen sc1")
    e("s_mov_b64 exec, -1")

def main():
    prologue()
    attn_phaseA()
    attn_main()
    k3()
    attn_fallback()
    helper()
    lab("Lend")
    e("s_endpgm")
    ref = open(f"cdna_kernels/{NAME}.s.ref").read().split("\n")
    head = []
    for ln in ref:
        if ln.startswith("; @launch"):
            head.append("; @launch grid=(256,1,1) block=(768,1,1) lds=163840")
        else:
            head.append(ln)
        if ln.startswith(f"{NAME}_kernel:"):
            break
    tail = f""".section .rodata,"a"
.p2align 6
.amdhsa_kernel {NAME}_kernel
  .amdhsa_next_free_vgpr 168
  .amdhsa_next_free_sgpr 102
  .amdhsa_accum_offset 168
  .amdhsa_group_segment_fixed_size 0
  .amdhsa_kernarg_size 112
  .amdhsa_user_sgpr_count 2
  .amdhsa_user_sgpr_kernarg_segment_ptr 1
  .amdhsa_system_sgpr_workgroup_id_x 1
.end_amdhsa_kernel
"""
    out = "\n".join(head) + "\n" + "\n".join(x for x in L if x is not None) + "\n" + tail
    path = [a for a in sys.argv[1:] if not a.startswith("--")]
    path = path[0] if path else f"cdna_kernels/{NAME}.s"
    open(path, "w").write(out)
    print("wrote", path, len(L), "lines")

main()
```

```python
import sys, math, struct

NAME = "gated_mix__grouped_kv_mqa__spectral_fnet__prompt"
def opt(name, default):
    for a in sys.argv:
        if a.startswith(f"--{name}="): return type(default)(a.split("=")[1])
    return default
DEBUGQ = "--debugq" in sys.argv
TRACE = "--trace" in sys.argv
TR = 0x1400000
FORCE_FB = "--forcefb" in sys.argv
NINIT = opt("ninit", 3)
PREPAT = opt("prepat", 1)
PRIOSW = opt("priosw", 24)
HPRIO = opt("hprio", 3)

L = []
def e(s): L.append("    " + s)
def lab(s): L.append(s + ":")
def cm(s): L.append("    ; " + s)
_uid = [0]
def uid(p):
    _uid[0] += 1
    return f"L{p}{_uid[0]}"
def f32(x): return "0x%08x" % struct.unpack("<I", struct.pack("<f", x))[0]
def vr(a, n): return f"v[{a}:{a+n-1}]"
def sr(a, n): return f"s[{a}:{a+n-1}]"
def sdiv(dst, src, d, nmax):
    for sh in range(8, 22):
        m = (1 << sh) // d + 1
        if all((u * m) >> sh == u // d for u in range(nmax)):
            e(f"s_mul_i32 {dst}, {src}, {m}")
            e(f"s_lshr_b32 {dst}, {dst}, {sh}")
            return
    raise ValueError

KV = 0x0; G_ = 0x30000; EW = 0x38000
FK = 0x40000; FX = 0x42000; FW = 0x44000; FA = 0x48000; FY = 0x4A000; FO = 0x4C000
XF = 0x100000; WDF = 0x400000; WSF = 0x500000; AF = 0x800000; PF = 0xA00000; RF = 0xC00000; OF = 0x1000000
QD = 0x1300000
WS_SIZE = 0x1700000
YP = 1408
OOB = 0x40000000
XF_ARR = 17*40*1024
AF_ARR = 11*34*1024
TAGC = 0x9E3779B8
TS = 2576
def TP(p): return (p-1)*TS
L_WKV = 0; L_PART = 25600; L_CH = 40960; SLOT = 18432
L_SYNC = 63*TS
SY_KVP = 0; SY_ARR = 4; SY_QD = 24; SY_GO = 28; SY_KVLD = 32; SY_PROG = 36; SY_TAG = 40; SY_KVST = 44
L_WO = 0; L_RED = 102400
L_ONES = TP(60) + 2560
SX, SWQ, SWKV, SWO, SWS, SOUT, SGATE, SREP = 8, 12, 16, 20, 24, 28, 36, 40
def S(b): return sr(b, 4)
s_w, s_rb, s_hg, s_xcd, s_idx = "s3", "s4", "s5", "s6", "s7"
s_tag = "s32"
s_bud = "s92"
s_vm = "s[94:95]"
s_hw = "s93"

def stamp(k):
    if not TRACE: return
    e("s_memrealtime s[96:97]")
    e("s_waitcnt lgkmcnt(0)")
    e(f"v_writelane_b32 v167, s96, {k}")

def cstamp(k):
    if not TRACE: return
    e("s_memtime s[96:97]")
    e("s_waitcnt lgkmcnt(0)")
    e(f"v_writelane_b32 v167, s96, {k}")

def trace_out():
    if not TRACE: return
    stamp(31)
    e("s_mul_i32 s96, s2, 12")
    e(f"s_add_u32 s96, s96, {s_w}")
    e("s_lshl_b32 s96, s96, 8")
    e(f"s_add_u32 s96, s96, {TR}")
    e("v_lshlrev_b32 v166, 2, v0")
    e(f"buffer_store_dword v167, v166, {S(SWS)}, s96 offen")

def spin_check(done):
    e(f"s_sub_u32 {s_bud}, {s_bud}, 1")
    e(f"s_cbranch_scc1 {done}")

def lds_signal(vaddr, vone, off):
    e("s_mov_b64 exec, 1")
    e(f"ds_add_u32 {vaddr}, {vone} offset:{off}")
    e("s_mov_b64 exec, -1")

def lds_wait(vaddr, vtmp, off, target, stmp="s44", sleep=1):
    a = uid("w"); d = uid("wd")
    lab(a)
    e(f"ds_read_b32 {vtmp}, {vaddr} offset:{off}")
    e("s_waitcnt lgkmcnt(0)")
    e(f"v_readfirstlane_b32 {stmp}, {vtmp}")
    e(f"s_cmp_ge_u32 {stmp}, {target}")
    e(f"s_cbranch_scc1 {d}")
    spin_check(d)
    if sleep: e(f"s_sleep {sleep}")
    e(f"s_branch {a}")
    lab(d)

def fpoll(vaddr, T, nl, soff="0", sleep=2):
    a = uid("g"); d = uid("gd")
    if nl < 64: e(f"s_mov_b64 exec, {(1<<nl)-1}")
    lab(a)
    e(f"buffer_load_dwordx4 {vr(T,4)}, {vaddr}, {S(SWS)}, {soff} offen sc1")
    e("s_waitcnt vmcnt(0)")
    for k in range(4): e(f"v_xor_b32 v{T+k}, {s_tag}, v{T+k}")
    e(f"v_or3_b32 v{T}, v{T}, v{T+1}, v{T+2}")
    e(f"v_or_b32 v{T}, v{T}, v{T+3}")
    e(f"v_cmp_ne_u32 vcc, 0, v{T}")
    e(f"s_cbranch_vccz {d}")
    spin_check(d)
    e(f"s_sleep {sleep}")
    e(f"s_branch {a}")
    lab(d)
    if nl < 64: e("s_mov_b64 exec, -1")

def prologue():
    e("s_cmp_ge_u32 s2, 256")
    e("s_cbranch_scc1 Lend")
    e("s_load_dwordx16 s[64:79], s[0:1], 0")
    e("s_load_dwordx8 s[80:87], s[0:1], 64")
    e("s_load_dwordx4 s[88:91], s[0:1], 96")
    e("v_lshrrev_b32 v1, 6, v0")
    e("v_and_b32 v0, 63, v0")
    e(f"s_and_b32 {s_xcd}, s2, 7")
    e(f"v_readfirstlane_b32 {s_w}, v1")
    e(f"s_lshr_b32 {s_idx}, s2, 3")
    e(f"s_and_b32 {s_rb}, {s_idx}, 3")
    e(f"s_lshl_b32 s44, {s_xcd}, 2")
    e(f"s_add_u32 {s_rb}, {s_rb}, s44")
    e(f"s_lshr_b32 {s_hg}, {s_idx}, 2")
    e(f"s_mov_b32 {s_bud}, 0x100000")
    e("s_mov_b32 s94, 0x000FFFFF")
    e("s_mov_b32 s95, 0x000FFFFF")
    e(f"s_sub_u32 {s_hw}, {s_w}, 8")
    for b, n in ((SX, 2621440), (SWQ, 819200), (SWKV, 25600), (SWO, 819200), (SWS, WS_SIZE),
                 (SOUT, 2621440), (SGATE, 1280), (SREP, 819200)):
        e(f"s_mov_b32 s{b+2}, {n}")
        e(f"s_mov_b32 s{b+3}, 0x00020000")
    if TRACE: e("v_mov_b32 v167, 0")
    e(f"v_mov_b32 v15, {L_SYNC}")
    e("v_mov_b32 v14, 1")
    e(f"s_cmp_ge_u32 {s_w}, 8")
    e("s_cbranch_scc1 Lhelper")

def srd_bases():
    e(f"s_cmp_ge_u32 {s_hg}, 4")
    e("s_waitcnt lgkmcnt(0)")
    e(f"s_cselect_b32 s{SWKV}, s70, s68")
    e(f"s_cselect_b32 s{SWKV+1}, s71, s69")
    for b, p in ((SX, 64), (SWQ, 66), (SWO, 72), (SWS, 90), (SOUT, 86), (SGATE, 84), (SREP, 80)):
        e(f"s_mov_b32 s{b}, s{p}")
        e(f"s_mov_b32 s{b+1}, s{p+1}")
    stamp(0)

S0, S1_, O_, P_, KM, KT, V0, V1, QM, QT = 16, 32, 48, 64, 72, 76, 80, 84, 88, 92
vK, vKt, vV0, vV1, vInc, vLd = "v94", "v95", "v96", "v97", "v98", "v99"

def attn_phaseA():
    cm("===== attention wave: phase A (Q projection) =====")
    e(f"s_cmp_lg_u32 {s_w}, 0")
    e("s_cbranch_scc1 La_noinit")
    e("v_lshlrev_b32 v2, 2, v0")
    e(f"v_add_u32 v2, {L_SYNC}, v2")
    e("v_mov_b32 v3, 0")
    e("ds_write_b32 v2, v3")
    e(f"v_mul_u32_u24 v2, {TS}, v0")
    e(f"v_add_u32 v2, {L_ONES}, v2")
    e("v_mov_b32 v4, 0x3F803F80")
    e("v_mov_b32 v5, v4")
    e("v_mov_b32 v6, v4")
    e("v_mov_b32 v7, v4")
    e("s_mov_b64 exec, 15")
    e("ds_write_b128 v2, v[4:7]")
    e("s_mov_b64 exec, -1")
    lab("La_noinit")
    e(f"s_lshl_b32 s44, {s_rb}, 6")
    e(f"s_lshr_b32 s45, {s_w}, 1")
    e("s_lshl_b32 s45, s45, 4")
    e("s_add_u32 s44, s44, s45")
    e("v_lshrrev_b32 v11, 2, v0")
    e("v_add_u32 v11, s44, v11")
    e("s_movk_i32 s46, 1280")
    e("v_mul_lo_u32 v1, v11, s46")
    e("v_lshrrev_b32 v12, 4, v0")
    e("v_and_b32 v13, 3, v0")
    e("v_xor_b32 v12, v12, v13")
    e("v_lshlrev_b32 v12, 4, v12")
    e("v_add_u32 v1, v1, v12")
    e(f"s_and_b32 s45, {s_w}, 1")
    e("s_lshl_b32 s45, s45, 6")
    e("v_add_u32 v1, s45, v1")
    e("v_subrev_u32 v13, 40, v0")
    e("v_cmp_gt_u32 vcc, 40, v0")
    e(f"s_lshl_b32 s44, {s_w}, 3")
    e(f"s_mul_i32 s45, {s_hg}, 160")
    e("v_cndmask_b32 v3, v13, v0, vcc")
    e("v_mul_u32_u24 v11, 26, v3")
    e("v_lshrrev_b32 v11, 8, v11")
    e("v_mul_u32_u24 v12, 10, v11")
    e("v_sub_u32 v12, v3, v12")
    e("v_lshrrev_b32 v13, 1, v11")
    e("v_and_b32 v11, 1, v11")
    e("v_lshlrev_b32 v11, 2, v11")
    e("v_add_u32 v11, v11, v13")
    e("v_add_u32 v11, s44, v11")
    e("v_mul_lo_u32 v2, v11, s46")
    e("v_lshlrev_b32 v12, 4, v12")
    e("v_add_u32 v2, v2, v12")
    e("v_add_u32 v2, s45, v2")
    e(f"s_lshl_b32 s47, {s_w}, 10")
    e(f"s_add_u32 s47, s47, {L_CH}")
    e(f"s_mul_i32 s48, {s_w}, 1280")
    e(f"s_add_u32 s48, s48, {L_CH+8192}")
    e("s_mov_b32 s50, -1")
    e("s_mov_b32 s51, 0xFF")
    srd_bases()
    e("s_barrier")
    stamp(1)
    def issue(p):
        for c in (2*p, 2*p+1):
            sl = c % 6
            e(f"s_add_u32 m0, s47, {sl*SLOT}")
            e(f"s_mov_b32 s49, {c*128}")
            e(f"buffer_load_dwordx4 v1, {S(SX)}, s49 offen lds")
            e("s_mov_b64 exec, s[50:51]")
            for i in range(2):
                e(f"s_add_u32 m0, s48, {sl*SLOT + i*640}")
                e(f"s_mov_b32 s49, {c*81920 + i*2560}")
                e(f"buffer_load_dwordx4 v2, {S(SWQ)}, s49 offen lds")
            e("s_mov_b64 exec, -1")
    for p in range(NINIT): issue(p)
    e("v_and_b32 v11, 15, v0")
    e("v_lshrrev_b32 v12, 5, v0")
    e("v_lshrrev_b32 v13, 2, v11")
    e("v_xor_b32 v12, v12, v13")
    e("v_lshlrev_b32 v11, 2, v11")
    e("v_add_u32 v11, v11, v12")
    e("v_lshlrev_b32 v5, 4, v11")
    e("v_bfe_u32 v12, v0, 4, 1")
    e("v_lshlrev_b32 v12, 11, v12")
    e("v_add_u32 v5, v5, v12")
    e(f"s_lshr_b32 s44, {s_w}, 2")
    e("s_lshl_b32 s44, s44, 12")
    e(f"s_add_u32 s44, s44, {L_CH}")
    e("v_add_u32 v5, s44, v5")
    e("v_xor_b32 v6, 32, v5")
    e("v_lshrrev_b32 v11, 5, v0")
    e("v_lshlrev_b32 v11, 3, v11")
    e("v_bfe_u32 v12, v0, 2, 2")
    e("v_lshlrev_b32 v12, 1, v12")
    e("v_add_u32 v11, v11, v12")
    e("v_mul_u32_u24 v7, 160, v11")
    e("v_bfe_u32 v12, v0, 4, 1")
    e("v_lshlrev_b32 v12, 5, v12")
    e("v_add_u32 v7, v7, v12")
    e("v_and_b32 v12, 3, v0")
    e("v_lshlrev_b32 v12, 3, v12")
    e("v_add_u32 v7, v7, v12")
    e(f"s_and_b32 s44, {s_w}, 3")
    e("s_mul_i32 s44, s44, 40")
    e(f"s_add_u32 s44, s44, {L_CH+8192}")
    e("v_add_u32 v7, s44, v7")
    e(f"v_add_u32 v8, {3*SLOT}, v5")
    e(f"v_add_u32 v9, {3*SLOT}, v6")
    e(f"v_add_u32 v10, {3*SLOT}, v7")
    QA = 128
    first = [True]
    def reads(c, fb):
        slot = c % 6
        xe, xo, wa = ("v5", "v6", "v7") if slot < 3 else ("v8", "v9", "v10")
        so = (slot % 3) * SLOT
        for ks in range(4):
            b = fb + ks*8
            e(f"ds_read_b128 {vr(b,4)}, {xo if ks & 1 else xe} offset:{so + (ks>>1)*1024}")
            e(f"ds_read_b64_tr_b16 {vr(b+4,2)}, {wa} offset:{so + ks*2560}")
            e(f"ds_read_b64_tr_b16 {vr(b+6,2)}, {wa} offset:{so + ks*2560 + 160}")
    def mf(fb, nks, outstanding_after):
        for ks in range(nks):
            b = fb + ks*8
            e(f"s_waitcnt lgkmcnt({min(15, outstanding_after + 3*(nks-1-ks))})")
            e(f"v_mfma_f32_32x32x16_bf16 {vr(QA,16)}, {vr(b+4,4)}, {vr(b,4)}, {'0' if first[0] else vr(QA,16)}")
            first[0] = False
    issued = NINIT
    for p in range(5):
        e(f"s_waitcnt vmcnt({6*(issued-1-p)})")
        lds_signal("v15", "v14", SY_ARR + 4*p)
        lds_wait("v15", "v13", SY_ARR + 4*p, 8, sleep=0)
        stamp(2+p)
        reads(2*p, 16)
        if issued < 5 and issued <= p + 2:
            issue(issued); issued += 1
        reads(2*p+1, 48)
        mf(16, 4, 12)
        mf(48, 4, 0)
    lds_signal("v15", "v14", SY_QD)
    cm("Q finalize")
    e(f"s_mov_b32 s44, {f32(math.log2(math.e)/math.sqrt(20.0))}")
    kv_addrs()
    e("v_cmp_gt_u32 vcc, 32, v0")
    e("v_mov_b32 v11, 0x3F80")
    e("v_mov_b32 v12, 0")
    e(f"v_cndmask_b32 v{KT+1}, v12, v11, vcc")
    e(f"v_mov_b32 v{QT+1}, 0")
    for i in range(12):
        e(f"v_mul_f32 v{QA+i}, s44, v{QA+i}")
    for i in range(4):
        e(f"v_cvt_pk_bf16_f32 v{QM+i}, v{QA+2*i}, v{QA+2*i+1}")
    e(f"v_cvt_pk_bf16_f32 v{QT}, v{QA+8}, v{QA+9}")
    e(f"v_cvt_pk_bf16_f32 v100, v{QA+10}, v{QA+11}")
    for i in range(16):
        e(f"v_mov_b32 v{O_+i}, 0")
    e(f"v_permlane32_swap_b32 v{QT}, v100")
    if DEBUGQ:
        e("s_lshl_b32 s44, s2, 3")
        e(f"s_add_u32 s44, s44, {s_w}")
        e("s_mul_i32 s44, s44, 1536")
        e(f"s_add_u32 s44, s44, {QD}")
        e("v_lshlrev_b32 v11, 2, v0")
        for i in range(5):
            e(f"buffer_store_dword v{QM+i}, v11, {S(SWS)}, s44 offen offset:{256*i}")
        e("s_waitcnt vmcnt(0)")
    stamp(7)

def kv_addrs():
    e(f"v_lshlrev_b32 {vK}, 4, v0")
    e(f"v_lshlrev_b32 {vKt}, 2, v0")
    e(f"v_add_u32 {vKt}, 1024, {vKt}")
    e("v_and_b32 v11, 31, v0")
    e("v_lshrrev_b32 v12, 5, v0")
    e("v_mul_u32_u24 v12, 20, v12")
    e("v_add_u32 v12, v11, v12")
    e("v_lshlrev_b32 v12, 4, v12")
    e("v_add_u32 v12, 1280, v12")
    e("v_cmp_eq_u32 vcc, 20, v11")
    e(f"v_mov_b32 v13, {OOB}")
    e(f"v_mov_b32 v101, {L_ONES}")
    e("v_mov_b32 v102, 0x3F803F80")
    e("v_mov_b32 v103, 0")
    e("v_cndmask_b32 v13, v13, v101, vcc")
    for i in range(8):
        e(f"v_cndmask_b32 v{V0+i}, v103, v102, vcc")
    e("v_cmp_gt_u32 vcc, 20, v11")
    e("v_add_u32 v101, 640, v12")
    e(f"v_mov_b32 v102, {4*TS}")
    e(f"v_cndmask_b32 {vV0}, v13, v12, vcc")
    e(f"v_cndmask_b32 {vV1}, v13, v101, vcc")
    e(f"v_cndmask_b32 {vInc}, v103, v102, vcc")

def qk(Sn):
    e(f"v_mfma_f32_32x32x8_bf16 {vr(Sn,16)}, {vr(KT,2)}, {vr(QT,2)}, 0")
    e(f"v_mfma_f32_32x32x16_bf16 {vr(Sn,16)}, {vr(KM,4)}, {vr(QM,4)}, {vr(Sn,16)}")

def rdK(k):
    e(f"ds_read_b128 {vr(KM,4)}, {vK} offset:{k*TS}")
    e(f"ds_read_b32 v{KT}, {vKt} offset:{k*TS}")
def rdV(k):
    e(f"ds_read_b128 {vr(V0,4)}, {vV0} offset:{k*TS}")
    e(f"ds_read_b128 {vr(V1,4)}, {vV1} offset:{k*TS}")

def tile_body(par, k, first=False, doQK=True, doK=True, rdld=False):
    Sc = S0 if par == 0 else S1_
    Sn = S1_ if par == 0 else S0
    def ex(a, b):
        for j in range(a, b+1): e(f"v_exp_f32 v{Sc+j}, v{Sc+j}")
    def cv(a, b):
        for j in range(a, b+1): e(f"v_cvt_pk_bf16_f32 v{P_+j}, v{Sc+2*j}, v{Sc+2*j+1}")
    ex(0, 1)
    if not first:
        e(f"v_mfma_f32_32x32x16_bf16 {vr(O_,16)}, {vr(V1,4)}, {vr(P_+4,4)}, {vr(O_,16)}")
        if rdld: e(f"ds_read_b32 {vLd}, v15 offset:{SY_KVLD}")
        rdV(k)
    ex(2, 5); cv(0, 1)
    if doQK:
        e(f"s_waitcnt lgkmcnt({0 if first else 2})")
        e(f"v_mfma_f32_32x32x8_bf16 {vr(Sn,16)}, {vr(KT,2)}, {vr(QT,2)}, 0")
    ex(6, 9); cv(2, 3)
    if doQK:
        e(f"v_mfma_f32_32x32x16_bf16 {vr(Sn,16)}, {vr(KM,4)}, {vr(QM,4)}, {vr(Sn,16)}")
    if doK: rdK(k+2)
    ex(10, 13); cv(4, 5)
    if not first: e(f"s_waitcnt lgkmcnt({2 if doK else 0})")
    e(f"v_mfma_f32_32x32x16_bf16 {vr(O_,16)}, {vr(V0,4)}, {vr(P_,4)}, {vr(O_,16)}")
    ex(14, 15)
    cv(6, 7)

def rowmax(Sx, dst):
    e(f"v_max3_f32 {dst}, v{Sx}, v{Sx+1}, v{Sx+2}")
    for k in range(3, 15, 2):
        e(f"v_max3_f32 {dst}, {dst}, v{Sx+k}, v{Sx+k+1}")
    e(f"v_max_f32 {dst}, {dst}, v{Sx+15}")

def halfmax(dst, tmp):
    e(f"v_mov_b32 {tmp}, {dst}")
    e("s_nop 1")
    e(f"v_permlane32_swap_b32 {tmp}, {dst}")
    e("s_nop 1")
    e(f"v_max_f32 {dst}, {dst}, {tmp}")

def attn_main():
    cm("===== attention main =====")
    lds_wait("v15", "v13", SY_GO, 1, stmp=s_tag, sleep=0)
    stamp(8)
    e(f"s_mul_i32 s46, {s_rb}, 5120")
    e(f"buffer_load_dwordx4 {vr(KM,4)}, {vK}, {S(SWS)}, s46 offen sc1")
    e(f"buffer_load_dword v{KT}, {vKt}, {S(SWS)}, s46 offen sc1")
    e(f"s_mov_b64 exec, {s_vm}")
    e(f"buffer_load_dwordx4 {vr(V0,4)}, {vV0}, {S(SWS)}, s46 offen sc1")
    e(f"buffer_load_dwordx4 {vr(V1,4)}, {vV1}, {S(SWS)}, s46 offen sc1")
    e("s_mov_b64 exec, -1")
    e("s_waitcnt vmcnt(2)")
    stamp(9)
    cstamp(32)
    qk(S0)
    e("s_nop 7"); e("s_nop 7")
    rowmax(S0, "v100")
    halfmax("v100", "v101")
    e("v_sub_f32 v100, 0, v100")
    e("v_mov_b32 v101, 0")
    e("v_cvt_pk_bf16_f32 v100, v100, v101")
    e("v_cmp_gt_u32 vcc, 32, v0")
    e("s_nop 1")
    e(f"v_cndmask_b32 v{QT+1}, v101, v100, vcc")
    e("s_nop 1")
    qk(S0)
    lds_wait("v15", "v13", SY_KVLD, 2, sleep=0)
    rdK(0)
    e("s_waitcnt vmcnt(0)")
    if PRIOSW:
        e(f"s_cmp_lt_u32 {s_w}, 4")
        e("s_cbranch_scc1 La_noprio")
        e("s_setprio 1")
        lab("La_noprio")
    e("s_nop 7")
    tile_body(0, -1, first=True)
    lds_wait("v15", "v13", SY_KVLD, 4, sleep=0)
    stamp(10)
    e("s_mov_b32 s46, 4")
    lab("Lattn_loop")
    for k in range(4):
        tile_body((1+k) & 1, k, rdld=(k == 3))
    e(f"v_add_u32 {vK}, {4*TS}, {vK}")
    e(f"v_add_u32 {vKt}, {4*TS}, {vKt}")
    e(f"v_readfirstlane_b32 s47, {vLd}")
    e(f"v_add_u32 {vV0}, {vInc}, {vV0}")
    e(f"v_add_u32 {vV1}, {vInc}, {vV1}")
    e("s_add_u32 s46, s46, 2")
    e("s_cmp_gt_u32 s46, 32")
    e("s_cbranch_scc1 Lattn_tail")
    e("s_cmp_lt_u32 s47, s46")
    e("s_cbranch_scc1 Lattn_slow")
    lab("Lattn_cont")
    if PRIOSW and PRIOSW != 24:
        e(f"s_cmp_eq_u32 s46, {PRIOSW}")
        e("s_cbranch_scc1 Lattn_prio")
    e("s_cmp_lg_u32 s46, 24")
    e("s_cbranch_scc1 Lattn_loop")
    lds_signal("v15", "v14", SY_PROG)
    if PRIOSW == 24: e("s_setprio 0")
    e("s_branch Lattn_loop")
    if PRIOSW and PRIOSW != 24:
        lab("Lattn_prio")
        e("s_setprio 0")
        e("s_branch Lattn_loop")
    lab("Lattn_slow")
    lds_wait("v15", "v13", SY_KVLD, "s46", sleep=1)
    e("s_branch Lattn_cont")
    lab("Lattn_tail")
    tile_body(1, 0)
    tile_body(0, 1, doK=False)
    tile_body(1, 2, doQK=False, doK=False)
    e("s_nop 1")
    e(f"v_mfma_f32_32x32x16_bf16 {vr(O_,16)}, {vr(V1,4)}, {vr(P_+4,4)}, {vr(O_,16)}")
    e(f"s_lshl_b32 s44, {s_hg}, 2")
    e(f"s_and_b32 s45, {s_w}, 3")
    e("s_add_u32 s48, s44, s45")
    e("s_mul_i32 s44, s48, 5")
    e("v_lshrrev_b32 v99, 5, v0")
    e("v_add_u32 v99, s44, v99")
    e("v_lshrrev_b32 v100, 1, v99")
    e("v_lshlrev_b32 v100, 15, v100")
    e("v_and_b32 v99, 1, v99")
    e("v_lshlrev_b32 v99, 3, v99")
    e("v_add_u32 v100, v100, v99")
    e(f"s_lshl_b32 s44, {s_rb}, 6")
    e(f"s_lshr_b32 s45, {s_w}, 2")
    e("s_lshl_b32 s45, s45, 5")
    e("s_add_u32 s44, s44, s45")
    e("s_add_u32 s48, s48, s44")
    e("s_lshl_b32 s48, s48, 2")
    e(f"s_add_u32 s48, s48, {FO}")
    e("v_and_b32 v99, 31, v0")
    e("v_add_u32 v99, s44, v99")
    e("v_lshlrev_b32 v99, 4, v99")
    e("v_add_u32 v100, v100, v99")
    e(f"v_mov_b32 v101, {OOB}")
    e("v_cmp_gt_u32 vcc, 32, v0")
    e("s_nop 3")
    e("v_cndmask_b32 v101, v101, v100, vcc")
    stamp(11)
    cstamp(33)
    lab("Lattn_chk")
    cm("l = row 20 (reg 8 of upper half); check range")
    e(f"v_mov_b32 v102, v{O_+8}")
    e(f"v_mov_b32 v103, v{O_+8}")
    e(f"s_mov_b32 s44, {f32(2.0**-30)}")
    e(f"s_mov_b32 s45, {f32(2.0**60)}")
    e("v_permlane32_swap_b32 v102, v103")
    e("s_nop 1")
    e("v_cmp_le_f32 s[46:47], s44, v103")
    e("v_cmp_ge_f32 s[50:51], s45, v103")
    e("v_rcp_f32 v98, v103")
    e("s_and_b64 s[46:47], s[46:47], s[50:51]")
    e("s_cmp_eq_u64 s[46:47], -1")
    if FORCE_FB:
        e("s_branch Lfallback")
    else:
        e("s_cbranch_scc0 Lfallback")
    lab("Lattn_epi")
    for i in range(12):
        e(f"v_mul_f32 v{O_+i}, v98, v{O_+i}")
    for i in range(6):
        e(f"v_cvt_pk_bf16_f32 v{P_+i}, v{O_+2*i}, v{O_+2*i+1}")
    e(f"s_mov_b32 s44, {OF}")
    e(f"s_mov_b32 s45, {OF+32768}")
    e(f"s_mov_b32 s46, {OF+65536}")
    e(f"buffer_store_dwordx2 {vr(P_,2)}, v100, {S(SWS)}, s44 offen sc1")
    e(f"buffer_store_dwordx2 {vr(P_+2,2)}, v100, {S(SWS)}, s45 offen sc1")
    e(f"buffer_store_dwordx2 {vr(P_+4,2)}, v101, {S(SWS)}, s46 offen sc1")
    e("v_mov_b32 v98, s48")
    e(f"v_mov_b32 v99, {s_tag}")

def attn_fallback():
    cm("===== fallback: true-max two-pass softmax reading K/V image from global =====")
    lab("Lfallback")
    e("v_mov_b32 v104, v100")
    e("v_mov_b32 v105, v101")
    kv_addrs()
    e(f"v_mov_b32 v{QT+1}, 0")
    e("v_mov_b32 v106, 0xff800000")
    e(f"s_mov_b32 s46, {KV}")
    lab("Lfb1")
    e(f"buffer_load_dwordx4 {vr(KM,4)}, {vK}, {S(SWS)}, s46 offen sc1")
    e(f"buffer_load_dword v{KT}, {vKt}, {S(SWS)}, s46 offen sc1")
    e("s_waitcnt vmcnt(0)")
    qk(S0)
    e("s_nop 7"); e("s_nop 7")
    rowmax(S0, "v100")
    e("v_max_f32 v106, v106, v100")
    e("s_add_u32 s46, s46, 2560")
    e(f"s_cmp_lt_u32 s46, {KV+163840}")
    e("s_cbranch_scc1 Lfb1")
    halfmax("v106", "v100")
    for i in range(16):
        e(f"v_mov_b32 v{O_+i}, 0")
    e(f"s_mov_b32 s46, {KV}")
    lab("Lfb2")
    e(f"buffer_load_dwordx4 {vr(KM,4)}, {vK}, {S(SWS)}, s46 offen sc1")
    e(f"buffer_load_dword v{KT}, {vKt}, {S(SWS)}, s46 offen sc1")
    e(f"s_mov_b64 exec, {s_vm}")
    e(f"buffer_load_dwordx4 {vr(V0,4)}, {vV0}, {S(SWS)}, s46 offen sc1")
    e(f"buffer_load_dwordx4 {vr(V1,4)}, {vV1}, {S(SWS)}, s46 offen sc1")
    e("s_mov_b64 exec, -1")
    e("s_waitcnt vmcnt(0)")
    qk(S0)
    e("s_nop 7"); e("s_nop 7")
    for k in range(16):
        e(f"v_sub_f32 v{S0+k}, v{S0+k}, v106")
    for k in range(16):
        e(f"v_exp_f32 v{S0+k}, v{S0+k}")
    e("s_nop 0")
    for k in range(8):
        e(f"v_cvt_pk_bf16_f32 v{P_+k}, v{S0+2*k}, v{S0+2*k+1}")
    e("s_nop 1")
    e(f"v_mfma_f32_32x32x16_bf16 {vr(O_,16)}, {vr(V0,4)}, {vr(P_,4)}, {vr(O_,16)}")
    e(f"v_mfma_f32_32x32x16_bf16 {vr(O_,16)}, {vr(V1,4)}, {vr(P_+4,4)}, {vr(O_,16)}")
    e("s_add_u32 s46, s46, 2560")
    e(f"s_cmp_lt_u32 s46, {KV+163840}")
    e("s_nop 7")
    e("s_cbranch_scc1 Lfb2")
    e("s_nop 7"); e("s_nop 7")
    e(f"v_mov_b32 v102, v{O_+8}")
    e(f"v_mov_b32 v103, v{O_+8}")
    e("v_mov_b32 v100, v104")
    e("v_mov_b32 v101, v105")
    e("v_permlane32_swap_b32 v102, v103")
    e("s_nop 1")
    e("v_rcp_f32 v98, v103")
    e("s_nop 0")
    e("s_branch Lattn_epi")

def k3():
    cm("===== output projection (attention waves) =====")
    e(f"s_lshl_b32 s44, {s_rb}, 6")
    e(f"s_and_b32 s45, {s_w}, 3")
    e("s_lshl_b32 s45, s45, 4")
    e("s_add_u32 s44, s44, s45")
    e(f"s_lshr_b32 s47, {s_w}, 2")
    e("v_and_b32 v11, 15, v0")
    e("v_add_u32 v11, s44, v11")
    e("v_lshrrev_b32 v12, 4, v0")
    e("v_lshlrev_b32 v1, 15, v12")
    e("v_lshlrev_b32 v13, 4, v11")
    e("v_add_u32 v1, v1, v13")
    e(f"s_mul_i32 s48, s47, {40*32768}")
    e(f"s_add_u32 s48, s48, {OF}")
    e("s_and_b32 s49, s44, 0xffffffe0")
    e("s_lshl_b32 s45, s47, 4")
    e("s_add_u32 s49, s49, s45")
    e("s_lshl_b32 s49, s49, 2")
    e(f"s_add_u32 s49, s49, {FO}")
    e("v_lshlrev_b32 v8, 4, v0")
    e("v_bfe_u32 v13, v0, 2, 2")
    e("v_lshlrev_b32 v10, 3, v12")
    e("v_add_u32 v13, v13, v10")
    e("v_and_b32 v10, 1, v12")
    e("v_lshlrev_b32 v10, 2, v10")
    e("v_add_u32 v13, v13, v10")
    e("v_xor_b32 v10, 4, v13")
    e("v_mul_u32_u24 v2, 160, v13")
    e("v_mul_u32_u24 v3, 160, v10")
    e("v_and_b32 v13, 3, v0")
    e("v_lshlrev_b32 v13, 3, v13")
    e("s_mul_i32 s45, s47, 51200")
    e(f"s_add_u32 s45, s45, {L_WO}")
    e("v_add_u32 v13, s45, v13")
    e("v_add_u32 v2, v2, v13")
    e("v_add_u32 v3, v3, v13")
    e("v_sub_u32 v13, 2048, v11")
    e(f"s_cmp_ge_u32 {s_rb}, 16")
    e("s_cselect_b64 vcc, -1, 0")
    e("s_cselect_b32 s50, 1, 0")
    e(f"s_movk_i32 s46, {YP}")
    e("v_cndmask_b32 v13, v11, v13, vcc")
    e("v_mul_lo_u32 v4, v13, s46")
    e(f"s_mul_i32 s45, {s_hg}, 320")
    e("v_lshlrev_b32 v13, 4, v12")
    e("v_add_u32 v13, s45, v13")
    e(f"v_sub_u32 v10, {637*4 - 256}, v13")
    e(f"s_cmp_ge_u32 {s_hg}, 4")
    e("s_cselect_b64 vcc, -1, 0")
    e("s_cselect_b32 s51, 1, 0")
    e("s_cmp_eq_u32 s50, s51")
    e(f"s_cselect_b32 s50, {f32(-1.0)}, {f32(1.0)}")
    e("v_cndmask_b32 v13, v13, v10, vcc")
    e("v_add_u32 v4, v4, v13")
    e("v_lshlrev_b32 v5, 2, v11")
    e("s_movk_i32 s46, 1280")
    e("v_mul_lo_u32 v6, v11, s46")
    e("v_lshlrev_b32 v13, 3, v12")
    e("v_add_u32 v6, v6, v13")
    e(f"s_mul_i32 s45, {s_hg}, 160")
    e("v_add_u32 v6, s45, v6")
    e(f"s_and_b32 s45, {s_w}, 3")
    e("s_mul_i32 s45, s45, 5120")
    e(f"s_add_u32 s45, s45, {L_RED}")
    e("v_add_u32 v7, s45, v8")
    e("s_waitcnt vmcnt(0)")
    e("s_mov_b64 exec, 1")
    e(f"buffer_store_dword v99, v98, {S(SWS)}, 0 offen sc1")
    e("s_mov_b64 exec, -1")
    stamp(12)
    e("s_barrier")
    stamp(13)
    OFR, ACC, AFR, YR, RR, GR = 16, 56, 76, 116, 136, 156
    e("s_cmp_eq_u32 s47, 0")
    e("s_cbranch_scc0 Lk3_poll")
    e(f"s_mov_b32 s46, {PF}")
    e(f"s_mov_b32 s45, {RF}")
    for ct in range(5):
        e(f"buffer_load_dwordx4 {vr(YR+4*ct,4)}, v4, {S(SWS)}, s46 offen offset:{64*ct} sc1")
        e(f"buffer_load_dwordx4 {vr(RR+4*ct,4)}, v4, {S(SWS)}, s45 offen offset:{64*ct} sc1")
    e(f"s_mov_b32 s46, {G_}")
    e(f"buffer_load_dword v{GR}, v5, {S(SWS)}, s46 offen sc1")
    lab("Lk3_poll")
    fpoll("v8", 160, 4, soff="s49", sleep=1)
    stamp(14)
    for i in range(10):
        e(f"buffer_load_dwordx4 {vr(OFR+4*i,4)}, v1, {S(SWS)}, s48 offen sc1")
        if i < 9: e(f"s_add_u32 s48, s48, 131072")
    def rd(i):
        b = AFR + (i & 1)*20
        for ct in range(5):
            e(f"ds_read_b64_tr_b16 {vr(b+4*ct,2)}, v2 offset:{i*5120 + ct*32}")
            e(f"ds_read_b64_tr_b16 {vr(b+4*ct+2,2)}, v3 offset:{i*5120 + ct*32}")
    rd(0)
    for i in range(10):
        if i < 9: rd(i+1)
        e(f"s_waitcnt vmcnt({9-i}) lgkmcnt({10 if i < 9 else 0})")
        b = AFR + (i & 1)*20
        for ct in range(5):
            e(f"v_mfma_f32_16x16x32_bf16 {vr(ACC+4*ct,4)}, {vr(b+4*ct,4)}, {vr(OFR+4*i,4)}, {'0' if i == 0 else vr(ACC+4*ct,4)}")
    stamp(15)
    e("s_cmp_eq_u32 s47, 0")
    e("s_cbranch_scc0 Lk3_hi")
    for k in range(20):
        e(f"v_fma_f32 v{YR+k}, s50, v{RR+k}, v{YR+k}")
    e("s_barrier")
    for ct in range(5):
        e(f"ds_read_b128 {vr(AFR+4*ct,4)}, v7 offset:{1024*ct}")
    e("s_cmp_eq_u32 s51, 0")
    e("s_cbranch_scc0 Lk3_mir")
    for mir in range(2):
        if mir: lab("Lk3_mir")
        for ct in range(5):
            e(f"s_waitcnt lgkmcnt({4-ct})")
            for r in range(4):
                a = ACC+4*ct+r
                y = YR+4*ct+r if not mir else YR+4*(4-ct)+(3-r)
                e(f"v_add_f32 v{a}, v{a}, v{AFR+4*ct+r}")
                e(f"v_sub_f32 v{a}, v{a}, v{y}")
                e(f"v_fma_f32 v{a}, v{GR}, v{a}, v{y}")
            e(f"v_cvt_pk_bf16_f32 v{OFR+2*ct}, v{ACC+4*ct}, v{ACC+4*ct+1}")
            e(f"v_cvt_pk_bf16_f32 v{OFR+2*ct+1}, v{ACC+4*ct+2}, v{ACC+4*ct+3}")
            e(f"buffer_store_dwordx2 {vr(OFR+2*ct,2)}, v6, {S(SOUT)}, 0 offen offset:{32*ct}")
        if TRACE: e("s_waitcnt vmcnt(0)")
        trace_out()
        e("s_endpgm")
    lab("Lk3_hi")
    e("s_nop 7")
    for ct in range(5):
        e(f"ds_write_b128 v7, {vr(ACC+4*ct,4)} offset:{1024*ct}")
    e("s_waitcnt lgkmcnt(0)")
    e("s_barrier")
    trace_out()
    e("s_endpgm")

def fold_compute(U, T, OUTR, vdst, sbase):
    e("s_mov_b32 s44, 0xffff0000")
    for i in range(4):
        for half in range(2):
            for k in range(4):
                if half == 0: e(f"v_lshlrev_b32 v{T+k}, 16, v{U+4*k+i}")
                else: e(f"v_and_b32 v{T+k}, s44, v{U+4*k+i}")
            e(f"v_add_f32 v{T+4}, v{T+0}, v{T+3}")
            e(f"v_add_f32 v{T+5}, v{T+1}, v{T+2}")
            e(f"v_sub_f32 v{T+6}, v{T+0}, v{T+3}")
            e(f"v_sub_f32 v{T+7}, v{T+2}, v{T+1}")
            o = T+8+4*half
            e(f"v_add_f32 v{o+0}, v{T+4}, v{T+5}")
            e(f"v_sub_f32 v{o+1}, v{T+4}, v{T+5}")
            e(f"v_add_f32 v{o+2}, v{T+6}, v{T+7}")
            e(f"v_sub_f32 v{o+3}, v{T+6}, v{T+7}")
        for a in range(4):
            e(f"v_cvt_pk_bf16_f32 v{OUTR+4*a+i}, v{T+8+a}, v{T+12+a}")
    for a in range(4):
        e(f"buffer_store_dwordx4 {vr(OUTR+4*a,4)}, {vdst}, {S(SWS)}, {sbase} offen sc1")
        if a < 3: e(f"s_add_u32 {sbase}, {sbase}, {XF_ARR}")

def helper():
    lab("Lhelper")
    cm("===== helper waves =====")
    if HPRIO: e(f"s_setprio {HPRIO}")
    XFR, GFR, WFR, ACC = 16, 36, 56, 72
    e(f"s_lshl_b32 s54, {s_rb}, 6")
    e(f"s_and_b32 s44, {s_hg}, 3")
    e("s_lshl_b32 s44, s44, 4")
    e("s_add_u32 s54, s54, s44")
    e(f"s_mul_i32 s55, {s_hw}, 6400")
    e("v_lshlrev_b32 v1, 4, v0")
    e("v_add_u32 v2, s55, v1")
    e("v_and_b32 v10, 15, v0")
    e("v_add_u32 v10, s54, v10")
    e("s_movk_i32 s46, 1280")
    e("v_mul_lo_u32 v3, v10, s46")
    e("v_lshrrev_b32 v11, 4, v0")
    e("v_lshlrev_b32 v4, 4, v11")
    e(f"s_mul_i32 s44, {s_hw}, 320")
    e("v_add_u32 v4, s44, v4")
    e("v_add_u32 v3, v3, v4")
    e(f"v_mov_b32 v9, {EW}")
    e("s_mov_b32 m0, s55")
    srd_bases()
    for i in range(5):
        e(f"buffer_load_dwordx4 {vr(XFR+4*i,4)}, v3, {S(SX)}, 0 offen offset:{64*i}")
    for i in range(4):
        e(f"buffer_load_dwordx4 v2, {S(SWKV)}, 0 offen offset:{1024*i} lds")
    e("s_add_u32 m0, s55, 4096")
    e("s_movk_i32 s44, 4096")
    e(f"buffer_load_dwordx4 v2, {S(SWKV)}, s44 offen lds")
    e(f"buffer_load_dwordx4 v2, {S(SWKV)}, s44 offen offset:1024 lds")
    e("s_mov_b64 exec, 0xffff")
    e(f"buffer_load_dwordx4 v2, {S(SWKV)}, s44 offen offset:2048 lds")
    e("s_mov_b64 exec, 1")
    e(f"buffer_load_dword v9, v9, {S(SWS)}, 0 offen sc1")
    e("s_mov_b64 exec, -1")
    e(f"s_cmp_lt_u32 {s_hg}, 4")
    e("s_cbranch_scc1 Lh_nogate")
    for i in range(5):
        e(f"buffer_load_dwordx4 {vr(GFR+4*i,4)}, v4, {S(SGATE)}, 0 offen offset:{64*i}")
    lab("Lh_nogate")
    e("s_barrier")
    stamp(1)
    e("v_lshlrev_b32 v5, 3, v11")
    e("v_bfe_u32 v12, v0, 2, 2")
    e("v_add_u32 v5, v5, v12")
    e("v_mul_u32_u24 v5, 40, v5")
    e("v_and_b32 v12, 3, v0")
    e("v_lshlrev_b32 v12, 3, v12")
    e("v_add_u32 v5, v5, v12")
    e("v_add_u32 v5, s55, v5")
    e(f"s_mul_i32 s44, {s_hw}, 3072")
    e(f"s_add_u32 s44, s44, {L_PART}")
    e("v_add_u32 v6, s44, v1")
    e("s_waitcnt vmcnt(0)")
    stamp(2)
    cm("K/V partial products")
    e(f"s_cmp_ge_u32 {s_hg}, 4")
    e("s_cbranch_scc1 Lh_vtype")
    for typ in range(2):
        if typ == 1: lab("Lh_vtype")
        def rd(i):
            b = WFR + (i & 1)*8
            for t in range(2):
                e(f"ds_read_b64_tr_b16 {vr(b+4*t,2)}, v5 offset:{i*1280 + t*32}")
                e(f"ds_read_b64_tr_b16 {vr(b+4*t+2,2)}, v5 offset:{i*1280 + 160 + t*32}")
        rd(0)
        for i in range(5):
            if i < 4: rd(i+1)
            e(f"s_waitcnt lgkmcnt({4 if i < 4 else 0})")
            b = WFR + (i & 1)*8
            for t in range(2):
                cin = '0' if i == 0 else vr(ACC+4*t,4)
                if typ == 0:
                    e(f"v_mfma_f32_16x16x32_bf16 {vr(ACC+4*t,4)}, {vr(b+4*t,4)}, {vr(XFR+4*i,4)}, {cin}")
                else:
                    e(f"v_mfma_f32_16x16x32_bf16 {vr(ACC+4*t,4)}, {vr(XFR+4*i,4)}, {vr(b+4*t,4)}, {cin}")
            if typ == 1:
                cin = '0' if i == 0 else vr(ACC+8,4)
                e(f"v_mfma_f32_16x16x32_bf16 {vr(ACC+8,4)}, {vr(XFR+4*i,4)}, {vr(GFR+4*i,4)}, {cin}")
        if typ == 0: e("s_branch Lh_part")
    lab("Lh_part")
    e(f"v_readfirstlane_b32 {s_tag}, v9")
    e("s_nop 6")
    for t in range(3):
        e(f"ds_write_b128 v6, {vr(ACC+4*t,4)} offset:{1024*t}")
    e(f"s_add_u32 {s_tag}, {s_tag}, {TAGC}")
    e(f"s_or_b32 {s_tag}, {s_tag}, 1")
    e("s_waitcnt lgkmcnt(0)")
    lds_signal("v15", "v14", SY_KVP)
    stamp(3)
    e(f"s_cmp_lg_u32 {s_hw}, 3")
    e("s_cbranch_scc1 Lprep")
    e(f"v_mov_b32 v8, {s_tag}")
    e(f"ds_write_b32 v15, v8 offset:{SY_TAG}")
    e("s_lshr_b32 s48, s54, 5")
    e("s_mul_i32 s48, s48, 2560")
    e(f"s_add_u32 s48, s48, {KV}")
    e("s_bfe_u32 s45, s54, 0x10004")
    e("v_and_b32 v10, 15, v0")
    e("v_lshrrev_b32 v11, 4, v0")
    e("v_and_b32 v12, 1, v11")
    e("v_lshrrev_b32 v7, 1, v11")
    e("v_lshlrev_b32 v7, 3, v7")
    e(f"v_mov_b32 v9, {OOB}")
    e(f"v_add_u32 v6, {L_PART}, v1")
    e(f"s_lshl_b32 s49, {s_rb}, 7")
    e(f"s_lshl_b32 s50, {s_hg}, 2")
    e("s_add_u32 s49, s49, s50")
    e(f"s_add_u32 s49, s49, {FK}")
    e("v_mov_b32 v4, s49")
    lds_wait("v15", "v13", SY_KVP, 4, sleep=0)
    stamp(4)
    RD = 84
    for h in range(4):
        for t in range(3):
            e(f"ds_read_b128 {vr(RD+12*h+4*t,4)}, v6 offset:{h*3072 + t*1024}")
    e("s_waitcnt lgkmcnt(6)")
    for k in range(12):
        e(f"v_add_f32 v{RD+k}, v{RD+k}, v{RD+12+k}")
    e("s_waitcnt lgkmcnt(0)")
    for k in range(12):
        e(f"v_add_f32 v{RD+24+k}, v{RD+24+k}, v{RD+36+k}")
    for k in range(12):
        e(f"v_add_f32 v{RD+k}, v{RD+k}, v{RD+24+k}")
    for k in range(4):
        e(f"v_cvt_pk_bf16_f32 v{ACC+k}, v{RD+2*k}, v{RD+2*k+1}")
    e(f"s_cmp_ge_u32 {s_hg}, 4")
    e("s_cbranch_scc1 Lh3_v")
    e("s_lshl_b32 s45, s45, 4")
    e("v_add_u32 v10, s45, v10")
    e("v_lshlrev_b32 v12, 5, v12")
    e("v_add_u32 v12, v12, v10")
    e("v_lshlrev_b32 v12, 4, v12")
    e("v_add_u32 v12, v12, v7")
    e("v_cmp_gt_u32 vcc, 16, v0")
    e("v_lshlrev_b32 v10, 2, v10")
    e(f"buffer_store_dwordx2 {vr(ACC,2)}, v12, {S(SWS)}, s48 offen sc1")
    e("v_cndmask_b32 v10, v9, v10, vcc")
    e(f"buffer_store_dword v{ACC+2}, v10, {S(SWS)}, s48 offen offset:1024 sc1")
    e(f"buffer_store_dword v{ACC+3}, v10, {S(SWS)}, s48 offen offset:1152 sc1")
    e("s_branch Lh3_arrive")
    lab("Lh3_v")
    e("s_mul_i32 s45, s45, 640")
    e("s_add_u32 s48, s48, s45")
    e("v_mul_u32_u24 v12, 20, v12")
    e("v_add_u32 v12, v12, v10")
    e("v_lshlrev_b32 v12, 4, v12")
    e("v_cmp_gt_u32 vcc, 4, v10")
    e("v_add_u32 v12, v12, v7")
    e(f"buffer_store_dwordx2 {vr(ACC,2)}, v12, {S(SWS)}, s48 offen offset:1280 sc1")
    e("v_cndmask_b32 v12, v9, v12, vcc")
    e(f"buffer_store_dwordx2 {vr(ACC+2,2)}, v12, {S(SWS)}, s48 offen offset:{1280+256} sc1")
    e(f"s_mov_b32 s45, {f32(-math.log2(math.e))}")
    for r in range(4):
        e(f"v_mul_f32 v{RD+8+r}, s45, v{RD+8+r}")
    for r in range(4):
        e(f"v_exp_f32 v{RD+8+r}, v{RD+8+r}")
    e("v_lshlrev_b32 v11, 4, v11")
    for r in range(4):
        e(f"v_add_f32 v{RD+8+r}, 1.0, v{RD+8+r}")
    e("v_cmp_eq_u32 vcc, 0, v10")
    for r in range(4):
        e(f"v_rcp_f32 v{RD+8+r}, v{RD+8+r}")
    e("v_cndmask_b32 v11, v9, v11, vcc")
    e("s_lshl_b32 s45, s54, 2")
    e(f"s_add_u32 s45, s45, {G_}")
    e(f"buffer_store_dwordx4 {vr(RD+8,4)}, v11, {S(SWS)}, s45 offen sc1")
    lab("Lh3_arrive")
    e("v_lshrrev_b32 v5, 1, v0")
    e(f"v_xor_b32 v5, {s_rb}, v5")
    e("v_lshlrev_b32 v5, 7, v5")
    e("v_and_b32 v6, 1, v0")
    e("v_lshlrev_b32 v6, 4, v6")
    e("v_add_u32 v5, v5, v6")
    e(f"v_add_u32 v5, {FK}, v5")
    e("v_cmp_le_u32 vcc, 32, v0")
    e("v_add_u32 v2, 4096, v1")
    e("v_add_u32 v3, 16, v1")
    e("v_cndmask_b32 v3, v1, v3, vcc")
    e("v_mov_b32 v7, v1")
    e("s_waitcnt vmcnt(0)")
    e("s_mov_b64 exec, 1")
    e(f"buffer_store_dword v8, v4, {S(SWS)}, 0 offen sc1")
    e("s_mov_b64 exec, -1")
    e(f"ds_write_b32 v15, v8 offset:{SY_KVST}")
    stamp(5)
    kvload()

def kvload():
    cm("===== hw3: K/V image -> LDS, blocks in xor order =====")
    X, Y, T = 16, 76, 136
    fpoll("v5", T, 4, sleep=1)
    e(f"ds_write_b32 v15, v8 offset:{SY_GO}")
    stamp(6)
    def ldblk(sj, R, pieces=range(5)):
        e(f"s_xor_b32 s44, {s_rb}, {sj}")
        e("s_mul_i32 s44, s44, 5120")
        for i, p in enumerate(pieces):
            if p < 4: e(f"buffer_load_dwordx4 {vr(R+4*i,4)}, v1, {S(SWS)}, s44 offen offset:{1024*p} sc1")
            else: e(f"buffer_load_dwordx4 {vr(R+4*i,4)}, v2, {S(SWS)}, s44 offen sc1")
    def wrblk(off, R, later, pieces=range(5)):
        n = len(pieces)
        for i, p in enumerate(pieces):
            e(f"s_waitcnt vmcnt({later + n-1-i})")
            if p < 2: e(f"ds_write_b128 v7, {vr(R+4*i,4)} offset:{off + 1024*p}")
            elif p == 2: e(f"ds_write_b128 v3, {vr(R+4*i,4)} offset:{off + 2048}")
            else: e(f"ds_write_b128 v7, {vr(R+4*i,4)} offset:{off + 1024*p + 16}")
    ldblk(0, X, [2, 3, 4])
    ldblk(1, X+12)
    e(f"buffer_load_dwordx4 {vr(T,4)}, v5, {S(SWS)}, 0 offen sc1")
    e("v_subrev_u32 v6, 512, v1")
    e("s_waitcnt vmcnt(8)")
    e("s_mov_b32 exec_lo, 0")
    e(f"ds_write_b128 v6, {vr(X,4)}")
    e("s_mov_b64 exec, -1")
    e("s_waitcnt vmcnt(7)")
    e(f"ds_write_b128 v7, {vr(X+4,4)} offset:{3072+16-TS}")
    e("s_waitcnt vmcnt(6)")
    e(f"ds_write_b128 v7, {vr(X+8,4)} offset:{4096+16-TS}")
    wrblk(TS, X+12, 1)
    e("v_mov_b32 v9, 2")
    e("s_waitcnt lgkmcnt(0)")
    e(f"ds_write_b32 v15, v9 offset:{SY_KVLD}")
    stamp(7)
    e("s_mov_b32 s56, 2")
    e("s_mov_b32 s57, 0")
    e("s_mov_b32 s52, 0x55555555")
    e("s_mov_b32 s53, 0x55555555")
    def mask():
        for k in range(4): e(f"v_xor_b32 v{T+k}, {s_tag}, v{T+k}")
        e(f"v_or3_b32 v{T}, v{T}, v{T+1}, v{T+2}")
        e(f"v_or_b32 v{T}, v{T}, v{T+3}")
        e(f"v_cmp_ne_u32 vcc, 0, v{T}")
        e("s_ff1_i32_b64 s58, vcc")
        e("s_lshr_b32 s58, s58, 1")
    e("s_waitcnt vmcnt(0)")
    mask()
    def need3():
        a = uid("n"); d = uid("nd")
        e("s_add_u32 s59, s56, 3")
        lab(a)
        e("s_cmp_ge_u32 s58, s59")
        e(f"s_cbranch_scc1 {d}")
        spin_check(d)
        e("s_sleep 1")
        e(f"buffer_load_dwordx4 {vr(T,4)}, v5, {S(SWS)}, 0 offen sc1")
        e("s_waitcnt vmcnt(0)")
        mask()
        e(f"s_branch {a}")
        lab(d)
    def ld3(R):
        need3()
        for i in range(3):
            ldblk("s56", R+20*i)
            e("s_add_u32 s56, s56, 1")
    def wr3(R, off, later):
        for i in range(3):
            wrblk(off + i*2*TS, R+20*i, later + 5*(2-i))
        e("v_add_u32 v9, 3, v9")
        e("s_waitcnt lgkmcnt(0)")
        e(f"ds_write_b32 v15, v9 offset:{SY_KVLD}")
    ld3(X)
    lab("Lkv_loop")
    ld3(Y)
    e("s_cmp_lg_u32 s56, 14")
    e("s_cbranch_scc1 Lkv_noq")
    lds_wait("v15", "v13", SY_QD, 8, sleep=1)
    lab("Lkv_noq")
    wr3(X, 3*TS, 15)
    e("s_cmp_ge_u32 s56, 32")
    e("s_cbranch_scc1 Lkv_last")
    ld3(X)
    wr3(Y, 9*TS, 15)
    e(f"v_add_u32 v7, {12*TS}, v7")
    e(f"v_add_u32 v3, {12*TS}, v3")
    e("s_branch Lkv_loop")
    lab("Lkv_last")
    wr3(Y, 9*TS, 0)
    stamp(8)
    e("s_cmp_lg_u32 s2, 0")
    e("s_cbranch_scc1 Lwo")
    e(f"v_mov_b32 v4, {EW}")
    e("s_mov_b64 exec, 1")
    e(f"buffer_store_dword v8, v4, {S(SWS)}, 0 offen sc1")
    e("s_mov_b64 exec, -1")
    e("s_branch Lwo")

def prep():
    lab("Lprep")
    cm("===== hw0-2: fold + repack =====")
    U, T, OUTR, RP = 16, 32, 48, 64
    e(f"s_mul_i32 s60, {s_idx}, 3")
    e(f"s_add_u32 s60, s60, {s_hw}")
    e(f"s_mul_i32 s61, {s_xcd}, 96")
    e("s_add_u32 s61, s61, s60")
    sdiv("s45", "s61", 40, 768)
    e("s_mul_i32 s46, s45, 40")
    e("s_sub_u32 s46, s61, s46")
    e("s_lshl_b32 s47, s61, 10")
    e(f"s_add_u32 s47, s47, {XF}")
    e("s_lshl_b32 s48, s45, 8")
    e("s_lshl_b32 s49, s46, 2")
    e("s_add_u32 s48, s48, s49")
    e(f"s_add_u32 s48, s48, {FX}")
    e("s_cmp_lt_u32 s61, 680")
    e(f"s_cselect_b32 s47, s47, {OOB}")
    e(f"s_cselect_b32 s48, s48, {OOB}")
    e("v_and_b32 v10, 0x13, v0")
    e("v_and_b32 v11, 4, v0")
    e("v_lshlrev_b32 v11, 1, v11")
    e("v_or_b32 v10, v10, v11")
    e("v_and_b32 v11, 8, v0")
    e("v_lshrrev_b32 v11, 1, v11")
    e("v_or_b32 v10, v10, v11")
    e("s_lshl_b32 s45, s45, 5")
    e("v_add_u32 v10, s45, v10")
    e("v_lshrrev_b32 v11, 5, v0")
    e("v_lshlrev_b32 v11, 4, v11")
    e("s_lshl_b32 s46, s46, 5")
    e("v_add_u32 v12, s46, v11")
    e("s_movk_i32 s46, 1280")
    e("v_mul_lo_u32 v13, v10, s46")
    e("v_add_u32 v2, v13, v12")
    e("v_sub_u32 v3, v12, v13")
    e(f"v_add_u32 v5, {2048*1280}, v3")
    e(f"v_add_u32 v3, {1024*1280}, v3")
    e(f"v_add_u32 v4, {1024*1280}, v2")
    e(f"v_mov_b32 v8, {OOB}")
    e("v_cmp_eq_u32 vcc, 0, v10")
    e("s_movk_i32 s45, 512")
    e("s_nop 0")
    e("v_cndmask_b32 v4, v4, v8, vcc")
    e("v_cmp_le_u32 vcc, s45, v10")
    e("s_nop 1")
    e("v_cndmask_b32 v3, v3, v8, vcc")
    e("v_cndmask_b32 v4, v4, v8, vcc")
    e("v_cmp_lt_u32 vcc, s45, v10")
    e("s_nop 1")
    e("v_cndmask_b32 v2, v2, v8, vcc")
    e("v_cndmask_b32 v5, v5, v8, vcc")
    e("s_cmp_lt_u32 s61, 210")
    e("s_cbranch_scc0 Lrp_ws")
    sdiv("s45", "s61", 10, 210)
    e("s_mul_i32 s46, s45, 10")
    e("s_sub_u32 s46, s61, s46")
    e("s_cmp_lt_u32 s45, 11")
    e(f"s_cselect_b32 s{SREP}, s80, s82")
    e(f"s_cselect_b32 s{SREP+1}, s81, s83")
    e("s_cselect_b32 s49, 0, 11")
    e("s_sub_u32 s49, s45, s49")
    e(f"s_mul_i32 s49, s49, {32*1280}")
    e("s_movk_i32 s50, 1280")
    e("s_mul_i32 s56, s45, 40960")
    e(f"s_add_u32 s56, s56, {WDF}")
    e(f"s_mov_b32 s57, {OOB}")
    e("s_cmp_eq_u32 s46, 9")
    e("s_cselect_b32 s58, 7, 1")
    e("s_branch Lrp_go")
    lab("Lrp_ws")
    e("s_sub_u32 s46, s61, 210")
    e("s_lshr_b32 s45, s46, 3")
    e("s_and_b32 s46, s46, 7")
    e("s_cmp_ge_u32 s45, 33")
    e(f"s_cselect_b32 s{SREP}, s78, s76")
    e(f"s_cselect_b32 s{SREP+1}, s79, s77")
    e(f"s_mov_b32 s{SREP+2}, 8388608")
    e("s_cselect_b32 s49, 33, 0")
    e("s_sub_u32 s49, s45, s49")
    e("s_mul_i32 s56, s45, 33792")
    e(f"s_add_u32 s56, s56, {WSF}")
    e("s_lshl_b32 s50, s49, 6")
    e("s_cmp_ge_u32 s49, 16")
    e("s_cselect_b32 s51, 1023, 0")
    e("s_sub_u32 s50, s50, s51")
    e("s_cmp_eq_u32 s49, 32")
    e("s_cselect_b32 s49, 1024, s50")
    e("s_lshl_b32 s49, s49, 12")
    e("s_movk_i32 s50, 8192")
    e("s_cmp_eq_u32 s46, 7")
    e(f"s_cselect_b32 s57, 0, {OOB}")
    e("s_mov_b32 s58, 1")
    e("s_cmp_lt_u32 s45, 65")
    e(f"s_cselect_b32 s49, s49, {OOB}")
    e(f"s_cselect_b32 s56, s56, {OOB}")
    e(f"s_cselect_b32 s45, s45, {OOB>>8}")
    e("s_add_u32 s45, s45, 21")
    lab("Lrp_go")
    e("s_lshl_b32 s59, s45, 7")
    e("s_lshl_b32 s51, s46, 2")
    e("s_add_u32 s59, s59, s51")
    e(f"s_add_u32 s59, s59, {FW}")
    e("v_and_b32 v6, 31, v0")
    e("v_mul_lo_u32 v6, v6, s50")
    e("v_add_u32 v6, v6, v11")
    e("s_lshl_b32 s51, s46, 7")
    e("s_add_u32 s49, s49, s51")
    e("v_add_u32 v6, s49, v6")
    e("s_lshl_b32 s51, s46, 12")
    e("s_add_u32 s56, s56, s51")
    e("v_lshlrev_b32 v7, 2, v0")
    e("v_add_u32 v7, s59, v7")
    e("v_mov_b32 v9, s48")
    if PREPAT == 3: lds_wait("v15", "v13", SY_QD, 8, sleep=2)
    if PREPAT >= 4: lds_wait("v15", "v13", SY_ARR + 4*(PREPAT-4), 8, sleep=2)
    lds_wait("v15", "v13", [SY_TAG, SY_KVST, SY_GO, SY_GO][min(PREPAT, 3)], 1, stmp=s_tag, sleep=1)
    stamp(4)
    for k in range(4):
        e(f"buffer_load_dwordx4 {vr(U+4*k,4)}, v{2+k}, {S(SX)}, 0 offen")
    for i in range(4):
        e(f"buffer_load_dwordx4 {vr(RP+4*i,4)}, v6, {S(SREP)}, 0 offen offset:{32*i}")
    e(f"buffer_load_dwordx4 {vr(RP+16,4)}, v6, {S(SREP)}, s57 offen offset:128")
    e(f"v_mov_b32 v8, {s_tag}")
    e("s_waitcnt vmcnt(5)")
    fold_compute(U, T, OUTR, "v1", "s47")
    for i in range(4):
        e("s_waitcnt vmcnt(8)")
        e(f"buffer_store_dwordx4 {vr(RP+4*i,4)}, v1, {S(SWS)}, s56 offen offset:{1024*i} sc1")
    e("s_add_u32 s56, s56, 4096")
    e("s_add_u32 s56, s56, s57")
    e("s_waitcnt vmcnt(8)")
    e(f"buffer_store_dwordx4 {vr(RP+16,4)}, v1, {S(SWS)}, s56 offen sc1")
    stage1_setup()
    e("s_waitcnt vmcnt(0)")
    e("s_mov_b64 exec, 1")
    e(f"buffer_store_dword v8, v9, {S(SWS)}, 0 offen sc1")
    e("s_mov_b32 exec_lo, s58")
    e(f"buffer_store_dword v8, v7, {S(SWS)}, 0 offen sc1")
    e("s_mov_b64 exec, -1")
    stamp(5)

def stage1_setup():
    cm("stage 1 job decode: slot s60 -> rt s54, a s55, ct s56 ; s63 = valid")
    e("s_mov_b32 s63, 1")
    e("s_cmp_ge_u32 s60, 84")
    e("s_cbranch_scc1 Ls1_x")
    e("s_cmp_ge_u32 s60, 42")
    e("s_cselect_b32 s54, 8, 0")
    e("s_cselect_b32 s45, 42, 0")
    e(f"s_add_u32 s54, s54, {s_xcd}")
    e("s_sub_u32 s45, s60, s45")
    e("s_branch Ls1_go")
    lab("Ls1_x")
    e("s_movk_i32 s54, 16")
    e(f"s_mul_i32 s45, {s_xcd}, 6")
    e("s_add_u32 s45, s45, s60")
    e("s_sub_u32 s45, s45, 84")
    e("s_cmp_ge_u32 s60, 90")
    e("s_cselect_b32 s63, 0, s63")
    e("s_cmp_ge_u32 s45, 42")
    e("s_cselect_b32 s63, 0, s63")
    e("s_cselect_b32 s45, 0, s45")
    lab("Ls1_go")
    e("s_mov_b32 s55, 0")
    e("s_mov_b32 s46, 0")
    for a, b in ((1, 11), (2, 22), (3, 32)):
        e(f"s_cmp_ge_u32 s45, {b}")
        e(f"s_cselect_b32 s55, {a}, s55")
        e(f"s_cselect_b32 s46, {b}, s46")
    e("s_sub_u32 s56, s45, s46")
    e("s_cmp_ge_u32 s55, 2")
    e("s_cselect_b32 s46, 11, 0")
    e("s_add_u32 s46, s46, s56")
    e("s_mul_i32 s48, s55, 17")
    e("s_add_u32 s48, s48, s54")
    e("s_mul_i32 s48, s48, 40960")
    e(f"s_add_u32 s48, s48, {XF}")
    e("s_mul_i32 s49, s46, 40960")
    e(f"s_add_u32 s49, s49, {WDF}")
    e("s_mov_b32 s50, 0")
    e("s_lshl_b32 s44, s54, 8")
    e(f"s_add_u32 s44, s44, {FX}")
    e("s_lshl_b32 s46, s46, 7")
    e(f"s_add_u32 s46, s46, {FW - 160}")
    e("v_mov_b32 v2, s44")
    e("v_mov_b32 v3, s46")
    e("v_cmp_gt_u32 vcc, 10, v0")
    e("s_movk_i32 s51, 0x1fff")
    e("s_mov_b32 s62, 1")
    e("v_cndmask_b32 v2, v3, v2, vcc")
    e("v_add_u32 v2, v2, v1")

def stage2_setup():
    cm("stage 2 job decode: slot s60 -> tile s54, cs s55, et s56 ; s63 valid")
    e("s_mov_b32 s63, 1")
    e("s_cmp_ge_u32 s60, 84")
    e("s_cbranch_scc1 Ls2_x")
    e("s_cmp_ge_u32 s60, 44")
    e("s_cbranch_scc1 Ls2_r")
    sdiv("s45", "s60", 11, 44)
    e("s_mul_i32 s46, s45, 11")
    e("s_sub_u32 s56, s60, s46")
    e("s_mov_b32 s55, 0")
    e("s_branch Ls2_t")
    lab("Ls2_r")
    e("s_sub_u32 s44, s60, 44")
    sdiv("s45", "s44", 10, 40)
    e("s_mul_i32 s46, s45, 10")
    e("s_sub_u32 s56, s44, s46")
    e("s_mov_b32 s55, 1")
    lab("Ls2_t")
    e(f"s_lshl_b32 s54, {s_xcd}, 2")
    e("s_add_u32 s54, s54, s45")
    e("s_branch Ls2_go")
    lab("Ls2_x")
    e("s_movk_i32 s54, 32")
    e("s_mov_b32 s55, 0")
    e(f"s_lshl_b32 s56, {s_xcd}, 1")
    e("s_add_u32 s56, s56, s60")
    e("s_sub_u32 s56, s56, 84")
    e("s_cmp_ge_u32 s60, 86")
    e("s_cselect_b32 s63, 0, s63")
    e("s_cmp_ge_u32 s56, 11")
    e("s_cselect_b32 s63, 0, s63")
    e("s_cselect_b32 s56, 0, s56")
    lab("Ls2_go")
    e("s_bfe_u32 s44, s54, 0x10004")
    e("s_lshl_b32 s45, s55, 1")
    e("s_add_u32 s44, s44, s45")
    e("s_mul_i32 s44, s44, 11")
    e("s_add_u32 s44, s44, s56")
    e(f"s_mul_i32 s48, s44, {34*1024}")
    e(f"s_add_u32 s48, s48, {AF}")
    e("s_mul_i32 s45, s55, 33")
    e("s_add_u32 s45, s45, s54")
    e("s_mul_i32 s49, s45, 33792")
    e(f"s_add_u32 s49, s49, {WSF}")
    e(f"s_mov_b32 s50, {OOB}")
    e("s_lshl_b32 s44, s44, 7")
    e(f"s_add_u32 s44, s44, {FA}")
    e("s_lshl_b32 s46, s45, 7")
    e(f"s_add_u32 s46, s46, {FW + 21*128 - 80}")
    e("v_mov_b32 v2, s44")
    e("v_mov_b32 v3, s46")
    e("v_cmp_gt_u32 vcc, 5, v0")
    e("s_movk_i32 s51, 0x7f")
    e("s_mov_b32 s62, 2")
    e("v_cndmask_b32 v2, v3, v2, vcc")
    e("v_add_u32 v2, v2, v1")

def stages():
    cm("===== FNet stages (generic 32x32 x K routine) =====")
    D = 16; B0 = 16; AC = 144; T = 160
    lab("Lstage")
    e("s_cmp_eq_u32 s63, 0")
    e("s_cbranch_scc1 Lstage_next")
    a = uid("g"); d = uid("gd")
    e("s_mov_b32 exec_lo, s51")
    e("s_mov_b32 exec_hi, 0")
    lab(a)
    e(f"buffer_load_dwordx4 {vr(T,4)}, v2, {S(SWS)}, 0 offen sc1")
    e("s_waitcnt vmcnt(0)")
    for k in range(4): e(f"v_xor_b32 v{T+k}, {s_tag}, v{T+k}")
    e(f"v_or3_b32 v{T}, v{T}, v{T+1}, v{T+2}")
    e(f"v_or_b32 v{T}, v{T}, v{T+3}")
    e(f"v_cmp_ne_u32 vcc, 0, v{T}")
    e(f"s_cbranch_vccz {d}")
    spin_check(d)
    e("s_sleep 4")
    e(f"s_branch {a}")
    lab(d)
    e("s_mov_b64 exec, -1")
    if TRACE:
        e("s_memrealtime s[96:97]")
        e("s_lshl_b32 s98, s62, 1")
        e("s_add_u32 m0, s98, 10")
        e("s_waitcnt lgkmcnt(0)")
        e("v_writelane_b32 v167, s96, m0")
    def ld(ks):
        b = B0 + (ks % D)*8
        if ks and ks % 4 == 0:
            for s in ("s48", "s49"): e(f"s_add_u32 {s}, {s}, 4096")
        if ks == 33:
            for s in ("s48", "s49"): e(f"s_add_u32 {s}, {s}, s50")
        o = (ks % 4)*1024
        e(f"buffer_load_dwordx4 {vr(b,4)}, v1, {S(SWS)}, s48 offen offset:{o} sc1")
        e(f"buffer_load_dwordx4 {vr(b+4,4)}, v1, {S(SWS)}, s49 offen offset:{o} sc1")
    for ks in range(D): ld(ks)
    for ks in range(40):
        rem = min(D-1, 39-ks)
        e(f"s_waitcnt vmcnt({2*rem})")
        b = B0 + (ks % D)*8
        e(f"v_mfma_f32_32x32x16_bf16 {vr(AC,16)}, {vr(b,4)}, {vr(b+4,4)}, {'0' if ks == 0 else vr(AC,16)}")
        if ks + D < 40: ld(ks + D)
        if ks == 32:
            e("s_cmp_eq_u32 s62, 2")
            e("s_cbranch_scc1 Ls2_fin")
    cm("stage 1 finish: AF addr = AF + ((a*11 + et)*34 + 2rt)*1024")
    e("s_mul_i32 s44, s55, 11")
    e("s_add_u32 s44, s44, s56")
    e("s_mul_i32 s49, s44, 34")
    e("s_lshl_b32 s50, s54, 1")
    e("s_add_u32 s49, s49, s50")
    e("s_lshl_b32 s49, s49, 10")
    e(f"s_add_u32 s49, s49, {AF}")
    e("s_lshl_b32 s44, s44, 7")
    e("s_lshl_b32 s45, s54, 2")
    e("s_add_u32 s44, s44, s45")
    e(f"s_add_u32 s44, s44, {FA}")
    e("v_lshlrev_b32 v10, 2, v0")
    e("v_add_u32 v10, s44, v10")
    e("s_cmp_eq_u32 s54, 16")
    e("s_cselect_b32 s58, 15, 1")
    e("s_nop 4")
    for k in range(8):
        e(f"v_cvt_pk_bf16_f32 v{B0+k}, v{AC+2*k}, v{AC+2*k+1}")
    for u in range(2):
        e(f"buffer_store_dwordx4 {vr(B0+4*u,4)}, v1, {S(SWS)}, s49 offen offset:{1024*u} sc1")
    e("s_branch Lstage_flag")
    lab("Ls2_fin")
    cm("stage 2 finish: rows t' = row0 + 2n")
    e("s_lshl_b32 s44, s54, 6")
    e("s_cmp_ge_u32 s54, 16")
    e("s_cselect_b32 s45, 1023, 0")
    e("s_sub_u32 s44, s44, s45")
    e("s_cmp_eq_u32 s54, 32")
    e("s_cselect_b32 s44, 1024, s44")
    e("s_cselect_b32 s45, 1, 32")
    e("s_cselect_b32 s47, 1, 0")
    e("v_and_b32 v10, 31, v0")
    e("v_lshlrev_b32 v11, 1, v10")
    e("v_add_u32 v11, s44, v11")
    e(f"s_movk_i32 s46, {YP}")
    e("v_mul_lo_u32 v3, v11, s46")
    e("v_cmp_gt_u32 vcc, s45, v10")
    e(f"v_mov_b32 v11, {OOB}")
    e("v_lshrrev_b32 v12, 5, v0")
    e("v_cndmask_b32 v3, v11, v3, vcc")
    e("v_lshlrev_b32 v12, 4, v12")
    e("s_lshl_b32 s45, s56, 7")
    e("v_add_u32 v12, s45, v12")
    e("v_add_u32 v3, v3, v12")
    e(f"s_mul_i32 s49, s55, {RF-PF}")
    e(f"s_add_u32 s49, s49, {PF}")
    e("s_mul_i32 s44, s55, 33")
    e("s_add_u32 s44, s44, s54")
    e("s_lshl_b32 s44, s44, 6")
    e("s_lshl_b32 s45, s56, 2")
    e("s_add_u32 s44, s44, s45")
    e(f"s_add_u32 s44, s44, {FY}")
    e("v_and_b32 v10, 1, v0")
    e("v_lshlrev_b32 v10, 2, v10")
    e("v_lshrrev_b32 v11, 1, v0")
    e(f"v_mul_u32_u24 v11, {33*64}, v11")
    e("v_add_u32 v10, v10, v11")
    e("v_add_u32 v10, s44, v10")
    e("s_cmp_eq_u32 s47, 1")
    e("s_cselect_b32 s58, 5, 1")
    e("s_cmp_eq_u32 s56, 10")
    e("s_cselect_b32 s58, 15, s58")
    for q in range(4):
        e(f"buffer_store_dwordx4 {vr(AC+4*q,4)}, v3, {S(SWS)}, s49 offen offset:{32*q} sc1")
    e("s_cmp_eq_u32 s58, 1")
    e("s_cbranch_scc1 Lstage_flag")
    for k in range(4): e(f"v_mov_b32 v{T+k}, 0")
    e(f"s_mov_b32 s49, {RF}")
    for q in range(4):
        e(f"buffer_store_dwordx4 {vr(T,4)}, v3, {S(SWS)}, s49 offen offset:{32*q} sc1")
    lab("Lstage_flag")
    e("s_waitcnt vmcnt(0)")
    e("s_mov_b32 exec_lo, s58")
    e("s_mov_b32 exec_hi, 0")
    e(f"buffer_store_dword v8, v10, {S(SWS)}, 0 offen sc1")
    e("s_mov_b64 exec, -1")
    if TRACE:
        e("s_memrealtime s[96:97]")
        e("s_lshl_b32 s98, s62, 1")
        e("s_add_u32 m0, s98, 11")
        e("s_waitcnt lgkmcnt(0)")
        e("v_writelane_b32 v167, s96, m0")
    lab("Lstage_next")
    e("s_cmp_eq_u32 s62, 2")
    e("s_cbranch_scc1 Lwo")
    stage2_setup()
    e("s_branch Lstage")

def wo_prefetch():
    lab("Lwo")
    cm("===== wo prefetch into retired KV tiles (each helper 5 groups of 32 rows) =====")
    e(f"s_mul_i32 s45, {s_hg}, 160")
    e("s_movk_i32 s46, 1280")
    e("s_movk_i32 s47, 205")
    for i in range(5):
        e(f"v_add_u32 v10, {64*i}, v0")
        e("v_mul_lo_u32 v11, v10, s47")
        e("v_lshrrev_b32 v11, 11, v11")
        e("v_mul_u32_u24 v12, 10, v11")
        e("v_sub_u32 v12, v10, v12")
        e("v_and_b32 v13, 8, v11")
        e("v_lshrrev_b32 v13, 1, v13")
        e("v_xor_b32 v11, v11, v13")
        e(f"v_mul_lo_u32 v{16+i}, v11, s46")
        e("v_lshlrev_b32 v12, 4, v12")
        e(f"v_add_u32 v{16+i}, v{16+i}, v12")
        e(f"v_add_u32 v{16+i}, s45, v{16+i}")
    e(f"s_mul_i32 s46, {s_hw}, {5*5120}")
    e(f"s_add_u32 s46, s46, {L_WO}")
    e(f"s_mul_i32 s45, {s_hw}, {5*40960}")
    lds_wait("v15", "v13", SY_PROG, 8, sleep=8)
    stamp(16)
    for g in range(5):
        for i in range(5):
            e(f"s_add_u32 m0, s46, {g*5120 + i*1024}")
            if i == 0 and g: e("s_add_u32 s45, s45, 40960")
            else: e("s_nop 0")
            e(f"buffer_load_dwordx4 v{16+i}, {S(SWO)}, s45 offen lds")
    e(f"s_cmp_eq_u32 {s_hw}, 3")
    e("s_cbranch_scc0 Lwo_done")
    cm("hw3 polls the FY flags: lane = (cs*3 + ti)*3 + quad")
    e(f"s_sub_u32 s44, 31, {s_rb}")
    e(f"s_cmp_ge_u32 {s_rb}, 16")
    e(f"s_cselect_b32 s44, s44, {s_rb}")
    e("s_cselect_b32 s45, 1, 0")
    e("s_add_u32 s45, s45, s44")
    e("s_cmp_eq_u32 s45, 16")
    e("s_cselect_b32 s45, 32, s45")
    e("s_add_u32 s46, s44, 16")
    e("v_mul_u32_u24 v10, 86, v0")
    e("v_lshrrev_b32 v10, 8, v10")
    e("v_mul_u32_u24 v11, 3, v10")
    e("v_sub_u32 v11, v0, v11")
    e("v_cmp_le_u32 vcc, 3, v10")
    e("v_subrev_u32 v12, 3, v10")
    e("v_mov_b32 v13, 33")
    e("v_cndmask_b32 v10, v10, v12, vcc")
    e("v_cndmask_b32 v13, 0, v13, vcc")
    e("v_mov_b32 v12, s44")
    e("v_mov_b32 v9, s46")
    e("v_cmp_eq_u32 vcc, 1, v10")
    e("s_nop 1")
    e("v_cndmask_b32 v12, v12, v9, vcc")
    e("v_mov_b32 v9, s45")
    e("v_cmp_eq_u32 vcc, 2, v10")
    e("s_nop 1")
    e("v_cndmask_b32 v12, v12, v9, vcc")
    e("v_add_u32 v12, v12, v13")
    e("v_lshlrev_b32 v12, 6, v12")
    e("v_lshlrev_b32 v11, 4, v11")
    e("v_add_u32 v12, v12, v11")
    e(f"s_mov_b32 s44, {FY}")
    fpoll("v12", 24, 18, soff="s44", sleep=4)
    lab("Lwo_done")
    e("s_waitcnt vmcnt(0)")
    stamp(17)
    e("s_barrier")
    trace_out()
    e("s_endpgm")

def main():
    prologue()
    attn_phaseA()
    attn_main()
    k3()
    helper()
    prep()
    stages()
    wo_prefetch()
    attn_fallback()
    lab("Lend")
    e("s_endpgm")
    ref = open(f"cdna_kernels/{NAME}.s.ref").read().split("\n")
    head = []
    for ln in ref:
        if ln.startswith("; @launch"):
            head.append("; @launch grid=(256,1,1) block=(768,1,1) lds=163840")
        else:
            head.append(ln)
        if ln.startswith(f"{NAME}_kernel:"):
            break
    tail = f""".section .rodata,"a"
.p2align 6
.amdhsa_kernel {NAME}_kernel
  .amdhsa_next_free_vgpr 168
  .amdhsa_next_free_sgpr 102
  .amdhsa_accum_offset 168
  .amdhsa_group_segment_fixed_size 0
  .amdhsa_kernarg_size 112
  .amdhsa_user_sgpr_count 2
  .amdhsa_user_sgpr_kernarg_segment_ptr 1
  .amdhsa_system_sgpr_workgroup_id_x 1
.end_amdhsa_kernel
"""
    out = "\n".join(head) + "\n" + "\n".join(x for x in L if x is not None) + "\n" + tail
    path = [a for a in sys.argv[1:] if not a.startswith("--")]
    path = path[0] if path else f"cdna_kernels/{NAME}.s"
    open(path, "w").write(out)
    print("wrote", path, len(L), "lines")

main()
```
